```python
import torch

def _softmax(x, axis=-1):
    return torch.softmax(x, dim=axis)
def _gelu(x):
    return torch.nn.functional.gelu(x, approximate="tanh")
def _silu(x):
    return torch.nn.functional.silu(x)
def _sigmoid(x):
    return torch.sigmoid(x)
def _layernorm(x, axis=-1, eps=1e-5):
    m = x.mean(dim=axis, keepdim=True)
    v = x.var(dim=axis, keepdim=True, unbiased=False)
    return (x - m) / torch.sqrt(v + eps)
def _scatter_add(tgt, idx, src, axis=0):
    return tgt.clone().index_add_(axis, idx, src)
def _segment_sum(src, seg, n):
    out = torch.zeros((n,) + src.shape[1:], dtype=src.dtype)
    return out.index_add_(0, seg, src)
def _pad(x, pw):
    flat = tuple(v for pair in reversed(pw) for v in pair)
    return torch.nn.functional.pad(x, flat)

kernel_name = 'standalone__gqa_block_cached__near_ridge'

def setup_inputs():

    _w = (lambda a: (lambda t: t.to(torch.bfloat16) if t.is_floating_point() else t)(torch.as_tensor(a)))
    B, Sq, D = 8, 224, 512
    Hq, Hkv, Sk, Dh = 32, 32, 1024, 128
    assert Hq % Hkv == 0, (Hq, Hkv)
    return {
        "x": _w((lambda *s: torch.randn(*s, dtype=torch.bfloat16) * 0.8)(B, Sq, D)),
        "k_cache": _w((lambda *s: torch.randn(*s, dtype=torch.bfloat16) * 0.8)(B, Hkv, Sk, Dh)),
        "v_cache": _w((lambda *s: torch.randn(*s, dtype=torch.bfloat16) * 0.05)(B, Hkv, Sk, Dh)),
        "wq": _w((lambda *s: torch.randn(*s, dtype=torch.bfloat16) * 0.8)(D, Hq * Dh) * (D ** -0.5)),
        "wo": _w((lambda *s: torch.randn(*s, dtype=torch.bfloat16) * 0.05)(Hq * Dh, D) * ((Hq * Dh) ** -0.5)),
    }

def reference(x, k_cache, v_cache, wq, wo):
    B, Sq, D = x.shape
    Hq, Dh = 32, 128
    Hkv = k_cache.shape[1]
    rep = Hq // Hkv
    q = (lambda x, *d: x.permute(*d))((x @ wq).reshape(B, Sq, Hq, Dh), 0, 2, 1, 3)
    k = (lambda x, n, axis: torch.repeat_interleave(x, n, dim=axis))(k_cache, rep, axis=1)
    v = (lambda x, n, axis: torch.repeat_interleave(x, n, dim=axis))(v_cache, rep, axis=1)
    scores = torch.einsum("bhqd,bhkd->bhqk", q, k) * (Dh ** -0.5)
    p = _softmax(scores, axis=-1)
    o = torch.einsum("bhqk,bhkd->bhqd", p, v)
    return (lambda x, *d: x.permute(*d))(o, 0, 2, 1, 3).reshape(B, Sq, Hq * Dh) @ wo
```

```python
import re

class Asm:
    def __init__(self):
        self.L = []
    def __call__(self, *lines):
        for s in lines:
            for t in s.split("\n"):
                t = t.strip()
                if t: self.L.append(t)
    def label(self, n): self.L.append(n + ":")
    def text(self):
        out = []
        for t in self.L:
            if t.endswith(":") or t.startswith(".") or t.startswith(";"): out.append(t)
            else: out.append("  " + t)
        return "\n".join(out) + "\n"

def vr(a, n=1, k="v"):
    return f"{k}{a}" if n == 1 else f"{k}[{a}:{a+n-1}]"
def ar(a, n=1): return vr(a, n, "a")
def sr(a, n=1): return vr(a, n, "s")

_reg = re.compile(r"\b([vas])(\d+)\b|\b([vas])\[(\d+):(\d+)\]")
def regs_of(op):
    out = []
    for m in _reg.finditer(op):
        if m.group(1): out.append((m.group(1), int(m.group(2))))
        else: out += [(m.group(3), i) for i in range(int(m.group(4)), int(m.group(5)) + 1)]
    return out

TRANS = ("v_exp_f32", "v_log_f32", "v_rcp_f32", "v_rsq_f32", "v_sqrt_f32", "v_sin_f32", "v_cos_f32")

def parse(line):
    line = line.split(";")[0].strip()
    if not line or line.endswith(":") or line.startswith("."): return None
    parts = line.split(None, 1)
    mn = parts[0]
    ops = [o.strip() for o in (parts[1] if len(parts) > 1 else "").split(",")]
    kind = "other"; dst = []; src = []
    if mn.startswith("v_mfma"):
        kind = "mfma"; dst = regs_of(ops[0]); src = regs_of(ops[1]) + regs_of(ops[2]); srcC = regs_of(ops[3])
        return (mn, dst, src, kind, srcC)
    if mn.startswith("v_cmp"):
        kind = "valu"; dst = regs_of(ops[0]); src = sum((regs_of(o) for o in ops[1:]), [])
    elif mn.startswith("v_permlane32_swap") or mn.startswith("v_permlane16_swap"):
        kind = "valu"; dst = regs_of(ops[0]) + regs_of(ops[1]); src = list(dst)
    elif mn.startswith("v_readfirstlane") or mn.startswith("v_readlane"):
        kind = "valu"; dst = regs_of(ops[0]); src = sum((regs_of(o) for o in ops[1:]), [])
    elif mn.startswith("v_"):
        kind = "valu"; dst = regs_of(ops[0]); src = sum((regs_of(o) for o in ops[1:]), [])
        if mn.startswith(("v_fmac", "v_pk_fmac", "v_dot2c")): src += dst
        if mn.startswith(("v_add_co", "v_addc_co", "v_sub_co")): src = sum((regs_of(o) for o in ops[2:]), [])
    elif mn.startswith("ds_read") or mn.startswith("ds_bpermute") or mn.startswith("ds_swizzle"):
        kind = "lds"; dst = regs_of(ops[0]); src = sum((regs_of(o) for o in ops[1:]), [])
    elif mn.startswith("ds_"):
        kind = "lds"; src = sum((regs_of(o) for o in ops), [])
    elif mn.startswith(("buffer_load", "global_load")):
        kind = "vmem"
        if " lds" in line or mn.startswith("global_load_lds"): src = sum((regs_of(o) for o in ops), [])
        else: dst = regs_of(ops[0]); src = sum((regs_of(o) for o in ops[1:]), [])
    elif mn.startswith(("buffer_store", "global_store", "global_atomic", "buffer_atomic")):
        kind = "vmem"; src = sum((regs_of(o) for o in ops), [])
        if "atomic" in mn and " sc0" in line: dst = regs_of(ops[0])
    elif mn.startswith("s_"):
        kind = "salu"
        if mn in ("s_nop",): kind = "nop"
    return (mn, dst, src, kind, [])

def wait_states(line):
    p = line.split()
    if p[0] == "s_nop": return int(p[1]) + 1
    return 1

def check_hazards(lines, fix=False, name=""):
    out = []
    pos = 0
    last_mfma_d = {}
    last_mfma_d_full = {}
    last_mfma_c = {}
    last_valu_w = {}
    last_trans_w = {}
    last_store = {}
    last_sgpr_valu = {}
    last_m0 = -100
    probs = []
    for ln in lines:
        p = parse(ln)
        if p is None:
            out.append(ln); continue
        mn, dst, src, kind, srcC = p
        need = 0; why = ""
        def req(d, lastpos, n, w):
            nonlocal need, why
            gap = pos - lastpos - 1
            if gap < n and n - gap > need: need = n - gap; why = w
        if kind == "mfma":
            for r in src + srcC:
                if r in last_valu_w: req(2, last_valu_w[r], 2, f"VALU write {r} -> MFMA read")
            for r in src:
                if r in last_mfma_d: req(0, last_mfma_d[r], 12, f"MFMA D {r} -> MFMA A/B")
            cset = tuple(srcC)
            for r in srcC:
                if r in last_mfma_d:
                    lp, full = last_mfma_d_full[r]
                    if full != cset: req(0, lp, 10, f"MFMA D {r} -> MFMA C partial")
        elif kind in ("valu", "lds", "vmem"):
            allr = src + (dst if kind != "lds" else dst)
            for r in allr:
                if r in last_mfma_d and r[0] in "va": req(0, last_mfma_d[r], 12, f"MFMA D {r} -> {mn}")
            if kind == "valu":
                for r in dst:
                    if r in last_mfma_c: req(0, last_mfma_c[r], 7, f"MFMA C read {r} -> VALU write (WAR)")
                    if r in last_store: req(0, last_store[r], 2, f"store data {r} -> VALU write")
                if mn not in TRANS:
                    for r in src:
                        if r in last_trans_w: req(0, last_trans_w[r], 1, f"trans {r} -> {mn}")
                if mn.startswith("v_permlane"):
                    for r in src:
                        if r in last_valu_w: req(0, last_valu_w[r], 2, f"VALU {r} -> permlane")
                if mn.startswith(("v_readfirstlane", "v_readlane")):
                    for r in src:
                        if r in last_valu_w: req(0, last_valu_w[r], 1, f"VALU {r} -> readlane")
                for r in src:
                    if r[0] == "s" and r in last_sgpr_valu: req(0, last_sgpr_valu[r], 2, f"VALU sgpr {r} -> VALU read")
                if "vcc" in ln and mn.startswith(("v_cndmask", "v_addc")) and ("s", -1) in last_sgpr_valu: req(0, last_sgpr_valu[("s", -1)], 2, "vcc")
            if kind == "vmem":
                for r in src:
                    if r[0] == "s" and r in last_sgpr_valu: req(0, last_sgpr_valu[r], 5, f"VALU sgpr {r} -> VMEM")
                if " lds" in ln or mn.startswith("global_load_lds"): req(0, last_m0, 1, "m0 -> lds dma")
        if need > 0:
            if fix:
                n = need
                while n > 0:
                    k = min(n, 16); out.append(f"s_nop {k-1}"); pos += k; n -= k
            else:
                probs.append(f"[{name}] {ln}: need {need} more wait states ({why})")
        out.append(ln)
        if kind == "mfma":
            for r in dst: last_mfma_d[r] = pos
            for r in dst: last_mfma_d_full[r] = (pos, tuple(dst))
            for r in srcC: last_mfma_c[r] = pos
            for r in dst: last_valu_w.pop(r, None); last_trans_w.pop(r, None)
        elif kind == "valu":
            for r in dst:
                if r[0] == "s": last_sgpr_valu[r] = pos
                else:
                    last_valu_w[r] = pos; last_mfma_d.pop(r, None)
                    if mn in TRANS: last_trans_w[r] = pos
                    else: last_trans_w.pop(r, None)
            if "vcc" in ln.split(None,1)[1].split(",")[0] or mn.startswith(("v_add_co","v_addc_co","v_sub_co")): last_sgpr_valu[("s", -1)] = pos
        elif kind in ("lds", "vmem"):
            for r in dst: last_mfma_d.pop(r, None); last_valu_w.pop(r, None); last_trans_w.pop(r, None)
            if kind == "vmem" and ("store_dwordx4" in mn or "store_dwordx3" in mn):
                ops = [o.strip() for o in ln.split(None,1)[1].split(",")]
                data = ops[1] if mn.startswith("global") else ops[0]
                for r in regs_of(data): last_store[r] = pos
        elif kind == "salu":
            ops = ln.split(None,1)
            if len(ops) > 1 and ops[1].split(",")[0].strip() == "m0": last_m0 = pos
            if len(ops) > 1:
                for r in regs_of(ops[1].split(",")[0]): last_sgpr_valu.pop(r, None)
        pos += wait_states(ln)
    if probs and not fix:
        raise Exception("HAZARDS:\n" + "\n".join(probs[:20]))
    return out
```

```python
import sys, struct
sys.path.insert(0, "dev")
from asmlib import *

NAME = "standalone__gqa_block_cached__near_ridge_kernel"
XOFF = 0; WOFF = XOFF + 28672; QBUF = 45056
RBASE = 98304
KSLOT = [139264, 155648, 122880, 131072]
VSLOT = [147456, 98304, 106496, 114688]
WOREG = [0, 32768, 65536]
SCRATCH = VSLOT[1]
LDS_BYTES = 163840
FLAG1 = 0; FLAG2 = 0x8000; OFRAG = 0x100000; PART = 0x1200000; STAMPS = 0x4000000
SRD_X, SRD_WQ, SRD_K, SRD_V, SRD_WO = 4, 8, 12, 16, 20
S_OUT, S_DBG, S_WS = 24, 26, 28
S_WAVE, S_B, S_H, S_C, S_J, S_ROT, S_KC, S_CNT, S_T0, S_T1 = 30, 31, 32, 33, 34, 35, 36, 37, 38, 39
S_EP = 40
S_T2, S_T3 = 42, 43
KA0, KA1 = 44, 52
SLOT_SRD = [60, 64, 68, 72]
SRD_WS = 60; SRD_OUT = 64
SLOT_BASE = [76, 77, 78, 79]; SLOT_STRIDE = [80, 81, 82, 83]; SLOT_LDS = [84, 85, 86, 87]
S_KOFF, S_VOFF = 88, 89
S_WOOFF, S_WOLDS = 90, 91
S_TS = 92
V_LANE = 255
KADDR = 240; VADDR = 248
VOFFK = 228; VOFFV = 232; VOFFO = 233
V_LA, V_LB = 237, 238
V_T = [252, 253, 254, 239]
SA, SB = 128, 144
PA, PB = 160, 168
WADDR = 128; XADDR = 132; SLOTV = 136; RAWX = 152; RAWW = 156; XADDR2 = 160; WADDR2 = 164
V_ZERO = 192
V_EP = 196
VL16 = 204; W_LO = 205; W_MID = 209
def ACC(blk, db): return blk * 64 + db * 16
def WF(st, ks, db): return st * 64 + (ks * 4 + db) * 4
def XF(st, blk, ks): return 128 + st * 32 + (blk * 4 + ks) * 4
def QF(blk, c): return 128 + blk * 32 + c * 4
def KF(c): return 192 + c * 4
def VF(db, ks): return 224 + (ks * 4 + db) * 4
def OFR(blk, kk): return 128 + blk * 32 + kk * 4
def PFR(o, blk, kk): return (o - 1) * 64 + blk * 32 + kk * 4
def WOF(par, nb): return 192 + par * 16 + nb * 4
QSCALE = 0.08838834764831845 * 1.4426950408889634
def f2u(x): return struct.unpack("<I", struct.pack("<f", x))[0]
MFMA = "v_mfma_f32_32x32x16_bf16"

class Gen:
    def __init__(self, stage=3, timing=False, dbg=()):
        self.A = Asm(); self.stage = stage; self.timing = timing; self.dbg = set(dbg); self.uid = 0

    def lab(self, p):
        self.uid += 1; return f"L_{p}{self.uid}"

    def weave(self, mfmas, gaps, pre=None):
        A = self.A
        for i, (m, g) in enumerate(zip(mfmas, gaps)):
            if pre and i in pre:
                for x in pre[i]: A(x)
            if m: A(m)
            for x in g: A(x)

    def stamp(self, idx):
        if "qst" in self.dbg and getattr(self, "lock", False): return
        if self.stage >= 3 and "qst" not in self.dbg:
            idx = {0: 0, 2: 1, 3: 2, 5: 3, 10: 4, 11: 5, 7: 6, 12: 7}.get(idx)
            if idx is None: return
        if self.timing:
            self.A("s_memtime s[100:101]", "s_waitcnt lgkmcnt(0)", f"s_mov_b32 s{S_TS+idx}, s100")

    def dump_stamps(self):
        if not self.timing: return
        A = self.A
        A("s_memrealtime s[100:101]", "s_waitcnt lgkmcnt(0)")
        A(f"s_lshl_b32 s{S_T0}, s2, 2", f"s_add_u32 s{S_T0}, s{S_T0}, s{S_WAVE}", f"s_lshl_b32 s{S_T0}, s{S_T0}, 6", f"s_add_u32 s{S_T0}, s{S_T0}, {STAMPS:#x}")
        A(f"v_mov_b32 v20, s{S_T0}")
        for i in range(8): A(f"v_mov_b32 v{4+i}, s{S_TS+i}")
        A(f"v_mov_b32 v12, s3", "v_mov_b32 v13, s100", "v_mov_b32 v14, 0", "v_mov_b32 v15, 0")
        A(f"v_cmp_eq_u32 vcc, 0, v{V_LANE}", "s_and_saveexec_b64 s[100:101], vcc")
        for i in range(3): A(f"global_store_dwordx4 v20, v[{4+4*i}:{7+4*i}], s[{S_WS}:{S_WS+1}] offset:{16*i}")
        A("s_waitcnt vmcnt(0)", "s_mov_b64 exec, s[100:101]")

    def prologue(self):
        A = self.A
        A("s_cmp_ge_u32 s2, 256", "s_cbranch_scc1 L_end")
        if self.timing:
            A("s_memrealtime s[100:101]", "s_waitcnt lgkmcnt(0)", "s_mov_b32 s3, s100")
            self.stamp(0)
        A(f"s_load_dwordx8 s[{KA0}:{KA0+7}], s[0:1], 0", f"s_load_dwordx8 s[{KA1}:{KA1+7}], s[0:1], 32")
        A("v_lshrrev_b32 v1, 6, v0", f"v_and_b32 v{V_LANE}, 63, v0")
        A(f"v_readfirstlane_b32 s{S_WAVE}, v1")
        A(f"s_and_b32 s{S_J}, s2, 7", f"s_lshr_b32 s{S_C}, s2, 3", f"s_and_b32 s{S_C}, s{S_C}, 3", f"s_lshr_b32 s{S_B}, s2, 5")
        A(f"s_lshl_b32 s{S_H}, s{S_J}, 2", f"s_add_u32 s{S_H}, s{S_H}, s{S_C}")
        if "rot8" in self.dbg:
            A(f"s_lshl_b32 s{S_ROT}, s{S_C}, 1", f"s_add_u32 s{S_ROT}, s{S_ROT}, s{S_B}", f"s_and_b32 s{S_ROT}, s{S_ROT}, 7")
        elif "rot4" in self.dbg:
            A(f"s_add_u32 s{S_ROT}, s{S_C}, s{S_B}", f"s_and_b32 s{S_ROT}, s{S_ROT}, 3", f"s_lshl_b32 s{S_ROT}, s{S_ROT}, 1")
        else:
            A(f"s_add_u32 s{S_ROT}, s{S_C}, s{S_B}", f"s_and_b32 s{S_ROT}, s{S_ROT}, 1", f"s_lshl_b32 s{S_ROT}, s{S_ROT}, 2")
        L = V_LANE
        A(f"v_lshrrev_b32 v2, 4, v{L}", f"v_and_b32 v3, 15, v{L}", f"v_and_b32 v4, 31, v{L}", f"v_lshrrev_b32 v5, 5, v{L}")
        A("v_lshrrev_b32 v6, 2, v3", "v_and_b32 v7, 3, v3")
        A("v_lshlrev_b32 v8, 2, v2", "v_xor_b32 v8, v8, v3", "v_lshlrev_b32 v8, 4, v8")
        A(f"v_lshl_add_u32 v{RAWW}, v2, 13, v8")
        for j in range(1, 4): A(f"v_add_u32 v{RAWW+j}, {j*31744}, v{RAWW}")
        A(f"v_and_b32 v9, 7, v{L}", "v_xor_b32 v9, v9, v2", "v_lshlrev_b32 v9, 4, v9", f"v_lshrrev_b32 v10, 3, v{L}")
        A(f"v_lshl_add_u32 v{RAWX}, v10, 10, v9")
        A(f"v_xor_b32 v{RAWX+1}, 64, v{RAWX}", f"v_add_u32 v{RAWX+1}, 7168, v{RAWX+1}")
        A(f"v_add_u32 v{RAWX+2}, 14336, v{RAWX}")
        A(f"v_add_u32 v{RAWX+3}, 14336, v{RAWX+1}")
        A("s_waitcnt lgkmcnt(0)")
        x, k, v, wq, wo = KA0, KA0+2, KA0+4, KA0+6, KA1
        A(f"s_mul_i32 s{S_T0}, s{S_B}, 229376")
        A(f"s_add_u32 s{SRD_X}, s{x}, s{S_T0}", f"s_addc_u32 s{SRD_X+1}, s{x+1}, 0", f"s_mov_b32 s{SRD_X+2}, 229376", f"s_mov_b32 s{SRD_X+3}, 0x20000")
        A(f"s_lshl_b32 s{S_T0}, s{S_H}, 8")
        A(f"s_add_u32 s{SRD_WQ}, s{wq}, s{S_T0}", f"s_addc_u32 s{SRD_WQ+1}, s{wq+1}, 0", f"s_sub_u32 s{SRD_WQ+2}, 0x400000, s{S_T0}", f"s_mov_b32 s{SRD_WQ+3}, 0x20000")
        A(f"s_cmp_eq_u32 s{S_WAVE}, 3", "s_cbranch_scc1 L_LW")

    def srds_rest(self):
        A = self.A
        x, k, v, wq, wo = KA0, KA0+2, KA0+4, KA0+6, KA1
        A(f"s_lshl_b32 s{S_T0}, s{S_B}, 5", f"s_add_u32 s{S_T0}, s{S_T0}, s{S_H}", f"s_lshl_b32 s{S_T0}, s{S_T0}, 18")
        A(f"s_add_u32 s{SRD_K}, s{k}, s{S_T0}", f"s_addc_u32 s{SRD_K+1}, s{k+1}, 0", f"s_mov_b32 s{SRD_K+2}, 0x40000", f"s_mov_b32 s{SRD_K+3}, 0x20000")
        A(f"s_add_u32 s{SRD_V}, s{v}, s{S_T0}", f"s_addc_u32 s{SRD_V+1}, s{v+1}, 0", f"s_mov_b32 s{SRD_V+2}, 0x40000", f"s_mov_b32 s{SRD_V+3}, 0x20000")
        A(f"s_lshl_b32 s{S_T0}, s{S_J}, 19", f"s_lshl_b32 s{S_T1}, s{S_C}, 8", f"s_add_u32 s{S_T0}, s{S_T0}, s{S_T1}")
        A(f"s_add_u32 s{SRD_WO}, s{wo}, s{S_T0}", f"s_addc_u32 s{SRD_WO+1}, s{wo+1}, 0", f"s_sub_u32 s{SRD_WO+2}, 0x400000, s{S_T0}", f"s_mov_b32 s{SRD_WO+3}, 0x20000")
        A(f"s_mov_b64 s[{S_OUT}:{S_OUT+1}], s[{KA1+2}:{KA1+3}]", f"s_mov_b64 s[{S_DBG}:{S_DBG+1}], s[{KA1+4}:{KA1+5}]", f"s_mov_b64 s[{S_WS}:{S_WS+1}], s[{KA1+6}:{KA1+7}]")

    def addr_regs(self):
        A = self.A
        A(f"v_lshl_add_u32 v{VOFFV}, v2, 8, v8")
        A("v_xor_b32 v9, v3, v2", "v_lshlrev_b32 v9, 4, v9", f"v_lshl_add_u32 v{VOFFK}, v2, 8, v9")
        for j in range(1, 4): A(f"v_xor_b32 v{VOFFK+j}, {j<<6}, v{VOFFK}")
        A(f"v_lshl_add_u32 v{VOFFO}, v2, 10, v8")
        for j in range(1, 4): A(f"v_add_u32 v{VOFFO+j}, {j*3072}, v{VOFFO}")
        A("v_and_b32 v9, 15, v4", "v_xor_b32 v9, v9, v5", "v_lshlrev_b32 v9, 4, v9", "v_lshl_add_u32 v9, v4, 8, v9", f"v_add_u32 v{KADDR}, {RBASE}, v9")
        for c in range(1, 8): A(f"v_xor_b32 v{KADDR+c}, {c<<5}, v{KADDR}")
        A("v_and_b32 v10, 1, v2", "v_lshlrev_b32 v10, 1, v10", "v_lshlrev_b32 v11, 2, v6", "v_or_b32 v10, v10, v11")
        A("v_lshrrev_b32 v11, 1, v7", "v_or_b32 v11, v11, v10", "v_lshlrev_b32 v11, 4, v11")
        A("v_and_b32 v12, 1, v7", "v_lshl_add_u32 v11, v12, 3, v11")
        A("v_lshl_add_u32 v12, v5, 2, v6", "v_lshl_add_u32 v11, v12, 8, v11", f"v_add_u32 v{VADDR}, {RBASE}, v11")
        for d in range(1, 4): A(f"v_xor_b32 v{VADDR+d}, {d<<6}, v{VADDR}")
        A("v_and_b32 v11, 1, v7", "v_or_b32 v11, v11, v10", "v_lshlrev_b32 v11, 4, v11")
        A("v_lshrrev_b32 v12, 1, v7", "v_lshl_add_u32 v11, v12, 3, v11")
        A("v_lshl_add_u32 v12, v5, 3, v6", "v_lshl_add_u32 v11, v12, 8, v11", f"v_add_u32 v{WADDR}, {WOFF}, v11")
        for d in range(1, 4): A(f"v_xor_b32 v{WADDR+d}, {d<<6}, v{WADDR}")
        A("v_lshrrev_b32 v11, 1, v4", "v_and_b32 v11, 7, v11", "v_xor_b32 v11, v11, v5", "v_lshlrev_b32 v11, 4, v11", "v_lshl_add_u32 v11, v4, 7, v11")
        A(f"s_lshl_b32 s{S_T0}, s{S_WAVE}, 13", f"s_add_u32 s{S_T0}, s{S_T0}, {XOFF}", f"v_add_u32 v{XADDR}, s{S_T0}, v11")
        for ks in range(1, 4): A(f"v_xor_b32 v{XADDR+ks}, {ks<<5}, v{XADDR}")
        for r in range(4):
            A(f"v_add_u32 v{XADDR2+r}, {2*QBUF}, v{XADDR+r}", f"v_add_u32 v{WADDR2+r}, {2*QBUF}, v{WADDR+r}")
        for r in range(4): A(f"v_mov_b32 v{V_ZERO+r}, 0")
        A(f"v_mov_b32 v{V_LA}, 0", f"v_mov_b32 v{V_LB}, 0")

    def q_slots_setup(self):
        A = self.A
        for k in range(4):
            A(f"s_lshl_b32 s{S_T0}, s{S_WAVE}, 2", f"s_add_u32 s{S_T0}, s{S_T0}, {k}")
            A(f"s_sub_u32 s{S_T1}, s{S_T0}, 7")
            A(f"s_cmp_lt_u32 s{S_T0}, 7")
            for w in range(4): A(f"s_cselect_b32 s{SLOT_SRD[k]+w}, s{SRD_X+w}, s{SRD_WQ+w}")
            A(f"s_cselect_b32 s{SLOT_STRIDE[k]}, 7, 19")
            A(f"s_cselect_b64 s[{S_T2}:{S_T3}], -1, 0")
            A(f"s_cselect_b32 s{S_T0}, s{S_T0}, s{S_T1}")
            A(f"s_cselect_b32 s{SLOT_BASE[k]}, 15, 17")
            A(f"s_cselect_b32 s{SLOT_LDS[k]}, 0, {WOFF-XOFF}")
            A(f"s_add_u32 s{SLOT_LDS[k]}, s{SLOT_LDS[k]}, {XOFF}")
            A(f"s_lshl_b32 s{SLOT_STRIDE[k]}, 1, s{SLOT_STRIDE[k]}")
            A(f"s_lshl_b32 s{SLOT_BASE[k]}, s{S_T0}, s{SLOT_BASE[k]}")
            A(f"s_lshl_b32 s{S_T0}, s{S_T0}, 12", f"s_add_u32 s{SLOT_LDS[k]}, s{SLOT_LDS[k]}, s{S_T0}")
            for j in range(4): A(f"v_cndmask_b32 v{SLOTV+4*k+j}, v{RAWW+j}, v{RAWX+j}, s[{S_T2}:{S_T3}]")

    def q_dma(self, buf):
        out = []
        for k in range(4):
            g = []
            lb = None
            if k == 3:
                lb = self.lab("qskip")
                g += [f"s_cmp_eq_u32 s{S_WAVE}, 2", f"s_cbranch_scc1 {lb}"]
            g += [f"s_mul_i32 s{S_T0}, s{S_KC}, s{SLOT_STRIDE[k]}", f"s_add_u32 s{S_T0}, s{S_T0}, s{SLOT_BASE[k]}", f"s_add_u32 m0, s{SLOT_LDS[k]}, {buf*QBUF}", "s_nop 0"]
            for j in range(4):
                g.append(f"buffer_load_dwordx4 v{SLOTV+4*k+j}, s[{SLOT_SRD[k]}:{SLOT_SRD[k]+3}], s{S_T0} offen offset:{j*1024}{' nt' if 'qnt' in self.dbg else ''} lds")
            if lb: g.append(lb + ":")
            out.append(g)
        out.append([f"s_add_u32 s{S_KC}, s{S_KC}, 1", f"s_and_b32 s{S_KC}, s{S_KC}, 7"])
        return out

    def q_reads(self, st, buf, nblk):
        rd = []
        xa, wa, bo = (XADDR, WADDR, buf * QBUF) if buf < 2 else (XADDR2, WADDR2, 0)
        for ks in range(4):
            for blk in range(nblk):
                rd.append(f"ds_read_b128 {ar(XF(st,blk,ks),4)}, v{xa+ks} offset:{bo + blk*4096}")
            for db in range(4):
                for jh in range(2):
                    rd.append(f"ds_read_b64_tr_b16 {ar(WF(st,ks,db)+2*jh,2)}, v{wa+db} offset:{bo + ks*4096 + jh*1024}")
        return rd

    KVSEQ = [("K",0),("V",0),("K",1),("V",1),("K",2),("V",2),("K",3)]

    KVQ = {5: [("K",0), ("V",0), ("K",1)], 6: [("V",1), ("K",2), ("V",2)]}

    def q_iter(self, i, nblk, lw):
        st = i & 1
        mf = []
        for ks in range(4):
            for db in range(4):
                for blk in range(nblk):
                    a = ACC(blk, db)
                    c = "0" if (i == 0 and ks == 0) else vr(a, 16)
                    mf.append(f"{MFMA} {vr(a,16)}, {ar(WF(st,ks,db),4)}, {ar(XF(st,blk,ks),4)}, {c}")
        n = len(mf)
        gaps = [[] for _ in range(n)]
        if not lw: gaps[0].append("s_waitcnt vmcnt(12)" if (i <= 5 and "q0" not in self.dbg) else "s_waitcnt vmcnt(0)")
        gaps[0].append("s_barrier")
        rds = self.q_reads(st ^ 1, (i + 1) % 3, nblk)
        span = n - 4 if not lw else n - 2
        for idx, r in enumerate(rds): gaps[1 + idx * span // len(rds)].append(r)
        if not lw:
            if i + 3 <= 7:
                flat = []
                for g in self.q_dma(i % 3): flat.append(g)
                pos = 1
                for g in flat:
                    pend = []
                    has_branch = any(x.startswith("s_cbranch") for x in g)
                    if has_branch:
                        gaps[pos] += g; pos += 2; continue
                    for x in g:
                        pend.append(x)
                        if x.startswith("buffer_load"):
                            gaps[pos] += pend; pend = []; pos += 2
                    if pend: gaps[min(pos, n - 1)] += pend
        else:
            dm = []
            kvq = self.KVQ if "kvearly" not in self.dbg else {0: [("K",0)], 1: [("V",0)], 2: [("K",1)], 5: [("V",1)], 6: [("K",2), ("V",2)]}
            for kind, t in kvq.get(i, []): dm += self.tile_dma(kind, t % 4, f"{t*8192}")
            if dm:
                per = -(-len(dm) // (n - 2))
                for idx, x in enumerate(dm): gaps[1 + idx // per].append(x)
        self.A("s_waitcnt lgkmcnt(0)")
        self.weave(mf, gaps)

    def q_last(self, nblk, lw):
        A = self.A
        st = 1
        tiles = [(blk, db) for blk in range(nblk) for db in range(4)]
        mf = []
        for blk, db in tiles:
            a = ACC(blk, db)
            for ks in range(4):
                mf.append(f"{MFMA} {vr(a,16)}, {ar(WF(st,ks,db),4)}, {ar(XF(st,blk,ks),4)}, {vr(a,16)}")
        nt = len(tiles)
        conv = []
        for blk, db in tiles:
            a = ACC(blk, db); c = []
            for r in range(a, a + 16): c.append(f"v_mul_f32 v{r}, s{S_T2}, v{r}")
            for u in range(2):
                for pj in range(4):
                    r = a + 8*u + 2*pj
                    c.append(f"v_cvt_pk_bf16_f32 v{r}, v{r}, v{r+1}")
            for u in range(2):
                for pj in range(4):
                    r = a + 8*u + 2*pj
                    c.append(f"v_accvgpr_write_b32 a{QF(blk, 2*db+u)+pj}, v{r}")
            conv.append(c)
        zero = [f"{MFMA} {vr(ACC(blk,db),16)}, {vr(V_ZERO,4)}, {vr(V_ZERO,4)}, 0" for blk, db in tiles]
        A(f"s_mov_b32 s{S_T2}, {f2u(QSCALE):#x}", "s_waitcnt lgkmcnt(0)")
        stream = []
        late = []
        for ti in range(nt):
            for ins in conv[ti]:
                ms = 4 * ti + 3 + 3
                if "accvgpr_write" in ins and tiles[ti][0] == 1: late.append((4 * nt, ins, ti))
                else: stream.append((ms, ins, ti))
        stream += late
        slots = mf + zero
        gaps = [[] for _ in slots]
        pos = 0
        done_tile = [0] * nt
        remaining = [len(c) for c in conv]
        out_m = []; out_g = []
        si = 0
        for s in range(len(mf)):
            g = []
            while si < len(stream) and stream[si][0] <= s and len(g) < 5:
                g.append(stream[si][1]); remaining[stream[si][2]] -= 1; si += 1
            out_m.append(mf[s]); out_g.append(g)
        kb = len(mf) - 3
        if lw:
            dm = self.tile_dma("K", 3, f"{3*8192}")
            for idx, x in enumerate(dm): out_g[idx][0:0] = [x] if idx < kb else []
            assert len(dm) <= kb
        bar = (["s_waitcnt vmcnt(48)" if "kv0" not in self.dbg else "s_waitcnt vmcnt(0)"] if lw else []) + ["s_barrier"]
        self.weave(out_m[:kb], out_g[:kb])
        A(out_m[kb]);
        for x in bar: A(x)
        for c in range(8): A(f"ds_read_b128 {ar(KF(c),4)}, v{KADDR+c} offset:{KSLOT[0]-RBASE}")
        for x in out_g[kb]: A(x)
        self.weave(out_m[kb+1:], out_g[kb+1:])
        zi = 0
        while si < len(stream) or zi < nt:
            if zi < nt and remaining[zi] == 0:
                A(zero[zi]); zi += 1
                continue
            cnt = 0
            while si < len(stream) and cnt < 6:
                A(stream[si][1]); remaining[stream[si][2]] -= 1; si += 1; cnt += 1
                if zi < nt and remaining[zi] == 0: break

    def dump_frags(self, nblk, fn):
        A = self.A
        A(f"s_lshl_b32 s{S_T0}, s2, 16", f"s_lshl_b32 s{S_T1}, s{S_WAVE}, 14", f"s_add_u32 s{S_T0}, s{S_T0}, s{S_T1}", f"s_add_u32 s{S_T0}, s{S_T0}, {OFRAG:#x}")
        A(f"v_lshlrev_b32 v{V_T[2]}, 4, v{V_LANE}", f"v_add_u32 v{V_T[2]}, s{S_T0}, v{V_T[2]}")
        for blk in range(nblk):
            for c in range(8):
                A(f"v_add_u32 v{V_T[3]}, {(blk*8+c)*1024}, v{V_T[2]}")
                A(f"global_store_dwordx4 v{V_T[3]}, {fn(blk,c)}, s[{S_WS}:{S_WS+1}]")
        A("s_waitcnt vmcnt(0)")

    def tile_dma(self, kind, slot, soff, nt=True):
        out = []
        if "nont" in self.dbg: nt = False
        base = (KSLOT if kind == "K" else VSLOT)[slot]
        srd = SRD_K if kind == "K" else SRD_V
        for g in range(2):
            out.append(f"s_add_u32 s{S_T1}, {soff}, {g*4096}" if not soff.isdigit() else f"s_mov_b32 s{S_T1}, {int(soff)+g*4096}")
            out.append(f"s_mov_b32 m0, {base + g*4096}")
            for j in range(4):
                vo = VOFFK + j if kind == "K" else VOFFV
                out.append(f"buffer_load_dwordx4 v{vo}, s[{srd}:{srd+3}], s{S_T1} offen offset:{j*1024}{' nt' if nt else ''} lds")
        res = []
        i = 0
        while i < len(out):
            res += [out[i+1], out[i]] + out[i+2:i+6]; i += 6
        return res

    def sm_items(self, blk, exp_gaps, lo=0, hi=16, extra_add=(), extra_cvt=(), skip=(15,)):
        S = SA if blk == 0 else SB; P = PA if blk == 0 else PB; Lr = V_LA if blk == 0 else V_LB
        out = {}
        def put(g, prio, ins):
            while g in skip: g += 1
            out.setdefault(g, []).append((prio, ins))
        for e in extra_add: put(0, 1, f"v_add_f32 v{Lr}, v{S+e}, v{Lr}")
        for p in extra_cvt: put(0, 2, f"v_cvt_pk_bf16_f32 v{P+p}, v{S+2*p}, v{S+2*p+1}")
        for i in range(lo, hi):
            g = exp_gaps[i - lo]
            put(g, 0, f"v_exp_f32 v{S+i}, v{S+i}")
            put(g + 1, 1, f"v_add_f32 v{Lr}, v{S+i}, v{Lr}")
            if i & 1:
                put(g + 1, 2, f"v_cvt_pk_bf16_f32 v{P+i//2}, v{S+i-1}, v{S+i}")
        return out

    def attn_iter(self, t, lw):
        A = self.A
        tm = t % 4
        do_qk = t + 1 <= 31; do_pv = t >= 0
        do_kr = t + 2 <= 31; do_vr = 0 <= t + 1 <= 31
        def qk(blk):
            S = SA if blk == 0 else SB
            return [f"{MFMA} {vr(S,16)}, {ar(KF(c),4)}, {ar(QF(blk,c),4)}, {'0' if c == 0 else vr(S,16)}" for c in range(8)] if do_qk else [None]*8
        def pv(blk):
            P = PA if blk == 0 else PB
            return [f"{MFMA} {vr(ACC(blk,db),16)}, {ar(VF(db,ks),4)}, {vr(P+4*ks,4)}, {vr(ACC(blk,db),16)}" for ks in range(2) for db in range(4)] if do_pv else [None]*8
        mf = qk(0) + pv(0) + (qk(1) + pv(1) if not lw else [None]*16)
        gaps = [[] for _ in range(33)]
        def merge(d):
            for g, lst in d.items():
                if g < 32: gaps[g] += lst
        BEXP = [28,29,30,31] + list(range(0,12))
        AEXP = [12,13,13,14] + list(range(16,28))
        if not lw:
            if t >= 0: merge(self.sm_items(1, BEXP[4:], lo=4, hi=16, extra_add=(3,), extra_cvt=(1,)))
            if do_qk:
                merge(self.sm_items(0, AEXP))
                merge(self.sm_items(1, BEXP[:4], lo=0, hi=4))
        else:
            if do_qk: merge(self.sm_items(0, AEXP))
        gl = [[ins for _, ins in sorted(g, key=lambda x: x[0])] for g in gaps]
        mem = [[] for _ in range(33)]
        kslot = (t + 2) % 4; vslot = (t + 1) % 4
        kr = [f"ds_read_b128 {ar(KF(c),4)}, v{KADDR+c} offset:{KSLOT[kslot]-RBASE}" for c in range(8)] if do_kr else []
        vrd = []
        if do_vr:
            for ks in range(2):
                for db in range(4):
                    for jh in range(2):
                        vrd.append(f"ds_read_b64_tr_b16 {ar(VF(db,ks)+2*jh,2)}, v{VADDR+db} offset:{VSLOT[vslot]-RBASE + ks*4096 + jh*2048}")
        if not lw:
            for c, r in enumerate(kr): mem[16 + c].append(r)
            for i, r in enumerate(vrd): mem[24 + i // 2].append(r)
        else:
            for c, r in enumerate(kr): mem[16 + c // 2].append(r)
            for i, r in enumerate(vrd): mem[20 + i // 4].append(r)
        bar = []
        if lw:
            w = ({29: 24, 30: 24} if self.stage >= 3 else {28: 24, 29: 8, 30: 0}).get(t, 32)
            if "kv0" in self.dbg: w = 0
            if t <= 30: bar.append(f"s_waitcnt vmcnt({w})")
        bar.append("s_barrier")
        if "dly" in self.dbg: bar += ["s_nop 15"] * 6
        if "kv16" in self.dbg and lw: bar = [x.replace("vmcnt(32)", "vmcnt(16)").replace("vmcnt(24)", "vmcnt(8)") for x in bar]
        mem[15] = bar
        if lw and t >= 0:
            dm = []
            if t <= 27:
                dm += self.tile_dma("K", tm, f"s{S_KOFF}") + self.tile_dma("V", (t + 3) % 4, f"s{S_VOFF}")
                dm += [f"s_add_u32 s{S_KOFF}, s{S_KOFF}, 8192", f"s_add_u32 s{S_VOFF}, s{S_VOFF}, 8192"]
            elif t == 28:
                dm += self.tile_dma("V", (t + 3) % 4, f"s{S_VOFF}")
                if self.stage >= 3: dm += self.wo_tile_dma(3, 0)
            elif self.stage >= 3:
                dm += self.wo_tile_dma(3, t - 28)
            if dm:
                per = -(-len(dm) // 14)
                for i, x in enumerate(dm): mem[i // per].append(x)
        if (not lw) and self.stage >= 3 and (t == -1 or (tm == 0 and 0 <= t <= 24)):
            dm = self.wo_group_dma()
            for i, x in enumerate(dm): mem[1 + i // 3].append(x)
        if do_qk: A("s_waitcnt lgkmcnt(15)" if t >= 0 else "s_waitcnt lgkmcnt(0)")
        for g in range(32):
            if g == 8 and do_pv: A("s_waitcnt lgkmcnt(0)")
            if mf[g]: A(mf[g])
            for x in mem[g]: A(x)
            for x in gl[g]: A(x)

    def wo_tile_dma(self, o, tile):
        out = []
        for g in range(2):
            out.append(f"s_mov_b32 m0, {KSLOT[tile] + g*4096}")
            out.append(f"s_add_u32 s{S_T1}, s{S_WOOFF}, {tile*32768 + g*16384}")
            for j in range(4):
                out.append(f"buffer_load_dwordx4 v{VOFFO+j}, s[{SRD_WO}:{SRD_WO+3}], s{S_T1} offen offset:{j*1024} lds")
        return out

    def wo_group_dma(self):
        out = [f"s_mov_b32 m0, s{S_WOLDS}", f"s_add_u32 s{S_WOLDS}, s{S_WOLDS}, 4096"]
        for j in range(4):
            out.append(f"buffer_load_dwordx4 v{VOFFO+j}, s[{SRD_WO}:{SRD_WO+3}], s{S_WOOFF} offen offset:{j*1024} lds")
        out.append(f"s_add_u32 s{S_WOOFF}, s{S_WOOFF}, 16384")
        return out

    def attention(self, lw):
        A = self.A
        tag = "LW" if lw else "CW"
        self.attn_iter(-1, lw)
        self.stamp(4)
        A(f"s_mov_b32 s{S_CNT}, 0")
        A(".p2align 4")
        A.label(f"L_attn_{tag}")
        start = len(A.L)
        for t in range(4): self.attn_iter(t, lw)
        body = A.L[start:]
        check_hazards(body + body, fix=False, name="attn loop " + tag)
        A(f"s_add_u32 s{S_CNT}, s{S_CNT}, 1", f"s_cmp_lt_u32 s{S_CNT}, 7", f"s_cbranch_scc1 L_attn_{tag}")
        for t in range(28, 32): self.attn_iter(t, lw)

    def normalize(self, nblk):
        A = self.A
        for blk in range(nblk):
            Lr = V_LA if blk == 0 else V_LB
            A(f"v_mov_b32 v{V_T[blk]}, v{Lr}")
        A("s_nop 1")
        for blk in range(nblk):
            Lr = V_LA if blk == 0 else V_LB
            A(f"v_permlane32_swap_b32 v{Lr}, v{V_T[blk]}")
        for blk in range(nblk):
            Lr = V_LA if blk == 0 else V_LB
            A(f"v_add_f32 v{Lr}, v{Lr}, v{V_T[blk]}")
        for blk in range(nblk):
            Lr = V_LA if blk == 0 else V_LB
            A(f"v_rcp_f32 v{V_T[blk]}, v{Lr}")
        A("s_nop 0")
        for blk in range(nblk):
            for db in range(4):
                a = ACC(blk, db)
                for r in range(a, a + 16): A(f"v_mul_f32 v{r}, v{V_T[blk]}, v{r}")
                for u in range(2):
                    for pj in range(4):
                        r = a + 8*u + 2*pj
                        A(f"v_cvt_pk_bf16_f32 v{OFR(blk, 2*db+u)+pj}, v{r}, v{r+1}")

    def poll(self, nflags, vaddr_reg):
        A = self.A
        lp = self.lab("poll"); done = self.lab("polld")
        A(f"s_mov_b64 s[{S_T2}:{S_T3}], exec", f"s_mov_b64 exec, {(1 << nflags) - 1}")
        A(f"s_mov_b32 s{S_CNT}, 0")
        A.label(lp)
        A(f"buffer_load_dwordx2 v[{V_EP+2}:{V_EP+3}], v{vaddr_reg}, s[{SRD_WS}:{SRD_WS+3}], 0 offen sc1")
        A("s_waitcnt vmcnt(0)")
        A(f"v_cmp_ne_u64 vcc, s[{S_EP}:{S_EP+1}], v[{V_EP+2}:{V_EP+3}]")
        A(f"s_add_u32 s{S_CNT}, s{S_CNT}, 1", f"s_cmp_gt_u32 s{S_CNT}, 0x40000", f"s_cbranch_scc1 {done}")
        A(f"s_cbranch_vccnz {lp}")
        A.label(done)
        A(f"s_mov_b64 exec, s[{S_T2}:{S_T3}]")

    def wo_reads(self, o, kk):
        par = kk & 1
        reg = [W_LO, W_LO, W_MID, VADDR][o]
        t = kk >> 1
        imm = [t * 8192, 32768 + t * 8192, t * 8192, KSLOT[t] - RBASE][o] + (kk & 1) * 4096
        return [f"ds_read_b64_tr_b16 {ar(WOF(par, nb) + 2*jh, 2)}, v{reg+nb} offset:{imm + jh*2048}" for nb in range(4) for jh in range(2)]

    def oproj_head(self, o, nblk, first, pre_wait=None):
        A = self.A
        for kk in range(8):
            par = kk & 1
            mf = []
            for nb in range(4):
                for blk in range(nblk):
                    a = ACC(blk, nb)
                    b = vr(OFR(blk, kk), 4) if o == 0 else ar(PFR(o, blk, kk), 4)
                    c = "0" if (first and kk == 0) else vr(a, 16)
                    mf.append(f"{MFMA} {vr(a,16)}, {ar(WOF(par, nb),4)}, {b}, {c}")
            nxt = self.wo_reads(o, kk + 1) if kk < 7 else (self.wo_reads(o + 1, 0) if o < 3 else [])
            gaps = [[] for _ in mf]
            for i, r in enumerate(nxt): gaps[min(len(mf) - 1, i * max(1, len(mf) - 2) // 8)].append(r)
            if pre_wait and kk == 0: A(pre_wait)
            A("s_waitcnt lgkmcnt(0)")
            self.weave(mf, gaps)

    def flag_store(self, base):
        A = self.A
        A(f"s_lshl_b32 s{S_T0}, s2, 7", f"s_add_u32 s{S_T0}, s{S_T0}, {base}", f"v_mov_b32 v{V_EP+6}, s{S_T0}")
        A(f"s_mov_b64 s[{S_T2}:{S_T3}], exec", "s_mov_b64 exec, 1")
        A(f"buffer_store_dwordx2 v[{V_EP}:{V_EP+1}], v{V_EP+6}, s[{SRD_WS}:{SRD_WS+3}], 0 offen sc1")
        A(f"s_mov_b64 exec, s[{S_T2}:{S_T3}]")

    def tail(self, lw):
        A = self.A
        nblk = 1 if lw else 2
        A(f"s_mov_b32 s{SRD_WS}, s{S_WS}", f"s_mov_b32 s{SRD_WS+1}, s{S_WS+1}", f"s_mov_b32 s{SRD_WS+2}, 0x10000000", f"s_mov_b32 s{SRD_WS+3}, 0x20000")
        A(f"s_mov_b32 s{SRD_OUT}, s{S_OUT}", f"s_mov_b32 s{SRD_OUT+1}, s{S_OUT+1}", f"s_mov_b32 s{SRD_OUT+2}, {8*224*512*2}", f"s_mov_b32 s{SRD_OUT+3}, 0x20000")
        A(f"v_lshlrev_b32 v{VL16}, 4, v{V_LANE}", f"s_lshl_b32 s{S_T0}, s{S_WAVE}, 14", f"v_add_u32 v{VL16}, s{S_T0}, v{VL16}")
        for nb in range(4):
            A(f"v_subrev_u32 v{W_LO+nb}, {RBASE}, v{VADDR+nb}")
            A(f"v_add_u32 v{W_MID+nb}, 65536, v{W_LO+nb}")
        A("s_nop 7")
        self.normalize(nblk)
        self.stamp(6)
        A(f"s_lshl_b32 s{S_T0}, s2, 16", f"s_add_u32 s{S_T0}, s{S_T0}, {OFRAG:#x}")
        for blk in range(nblk):
            for half in range(2):
                A(f"s_add_u32 s{S_T1}, s{S_T0}, {(blk*8 + half*4)*1024}")
                for q in range(4):
                    A(f"buffer_store_dwordx4 {vr(OFR(blk, half*4+q),4)}, v{VL16}, s[{SRD_WS}:{SRD_WS+3}], s{S_T1} offen offset:{q*1024} sc1")
        A("s_waitcnt vmcnt(0)", "s_barrier")
        self.stamp(10)
        if lw:
            A(f"v_readfirstlane_b32 s{S_EP}, v{V_EP+4}", f"v_readfirstlane_b32 s{S_EP+1}, v{V_EP+5}")
            A(f"v_readfirstlane_b32 s{S_T0}, v{V_EP}", f"v_readfirstlane_b32 s{S_T1}, v{V_EP+1}")
            A("s_nop 3")
            A(f"s_or_b32 s{S_T2}, s{S_EP}, s{S_EP+1}", f"s_cmp_eq_u32 s{S_T2}, 0")
            A(f"s_cselect_b32 s{S_EP}, s{S_T0}, s{S_EP}", f"s_cselect_b32 s{S_EP+1}, s{S_T1}, s{S_EP+1}")
            A(f"v_mov_b32 v{V_EP}, s{S_EP}", f"v_mov_b32 v{V_EP+1}, s{S_EP+1}")
            self.flag_store(FLAG1)
        for r in self.wo_reads(0, 0): A(r)
        self.oproj_head(0, nblk, True)
        if lw:
            A(f"v_add_u32 v{V_EP+6}, 1, v{V_LANE}", f"v_lshlrev_b32 v{V_EP+6}, 3, v{V_EP+6}", f"v_xor_b32 v{V_EP+6}, s2, v{V_EP+6}", f"v_lshlrev_b32 v{V_EP+6}, 7, v{V_EP+6}")
            self.poll(3, V_EP + 6)
        A("s_barrier")
        self.stamp(11)
        for o in range(1, 4):
            A(f"s_add_u32 s{S_T0}, s{S_C}, {o}", f"s_and_b32 s{S_T0}, s{S_T0}, 3", f"s_lshl_b32 s{S_T0}, s{S_T0}, 3", f"s_andn2_b32 s{S_T1}, s2, 24", f"s_or_b32 s{S_T0}, s{S_T0}, s{S_T1}")
            A(f"s_lshl_b32 s{S_T0}, s{S_T0}, 16", f"s_add_u32 s{S_T0}, s{S_T0}, {OFRAG:#x}")
            for blk in range(nblk):
                for half in range(2):
                    A(f"s_add_u32 s{S_T1}, s{S_T0}, {(blk*8 + half*4)*1024}")
                    for q in range(4):
                        A(f"buffer_load_dwordx4 {ar(PFR(o, blk, half*4+q),4)}, v{VL16}, s[{SRD_WS}:{SRD_WS+3}], s{S_T1} offen offset:{q*1024} sc1")
        n = 8 * nblk
        for o in range(1, 4):
            self.oproj_head(o, nblk, False, pre_wait=f"s_waitcnt vmcnt({(3 - o) * n})")
        self.stamp(7)
        A("s_nop 7", "s_nop 7")
        A(f"s_lshl_b32 s{S_T0}, s2, 16", f"s_add_u32 s{S_T0}, s{S_T0}, {PART:#x}")
        for blk in range(nblk):
            for nb in range(4):
                a = ACC(blk, nb)
                for u in range(2):
                    d = 128 + (blk * 8 + nb * 2 + u) * 4
                    for pj in range(4): A(f"v_cvt_pk_bf16_f32 v{d+pj}, v{a+8*u+2*pj}, v{a+8*u+2*pj+1}")
            for half in range(2):
                A(f"s_add_u32 s{S_T1}, s{S_T0}, {(blk*8 + half*4)*1024}")
                for q in range(4):
                    d = 128 + (blk * 8 + half * 4 + q) * 4
                    A(f"buffer_store_dwordx4 {vr(d,4)}, v{VL16}, s[{SRD_WS}:{SRD_WS+3}], s{S_T1} offen offset:{q*1024} sc1")
        A("s_waitcnt vmcnt(0)", "s_barrier")
        if lw:
            self.flag_store(FLAG2)
            A(f"s_andn2_b32 s{S_T0}, s2, 7", f"v_add_u32 v{V_EP+6}, s{S_T0}, v{V_LANE}", f"v_lshlrev_b32 v{V_EP+6}, 7, v{V_EP+6}", f"v_add_u32 v{V_EP+6}, {FLAG2}, v{V_EP+6}")
            self.poll(8, V_EP + 6)
        A("s_barrier")
        A(f"s_andn2_b32 s{S_T0}, s2, 7", f"s_lshl_b32 s{S_T0}, s{S_T0}, 16", f"s_lshl_b32 s{S_T1}, s{S_J}, 10", f"s_add_u32 s{S_T0}, s{S_T0}, s{S_T1}", f"s_add_u32 s{S_T0}, s{S_T0}, {PART:#x}")
        for blk in range(nblk):
            for sp in range(8):
                d = (blk * 8 + sp) * 4
                A(f"s_add_u32 s{S_T1}, s{S_T0}, {sp*65536 + blk*8192}")
                A(f"buffer_load_dwordx4 {vr(d,4)}, v{VL16}, s[{SRD_WS}:{SRD_WS+3}], s{S_T1} offen sc1")
        VO = W_LO
        A(f"v_and_b32 v{VO}, 31, v{V_LANE}", f"v_lshlrev_b32 v{VO}, 10, v{VO}", f"v_lshrrev_b32 v{VO+1}, 5, v{V_LANE}", f"v_lshl_add_u32 v{VO}, v{VO+1}, 4, v{VO}")
        A(f"s_mul_i32 s{S_T2}, s{S_B}, {224*1024}", f"s_lshl_b32 s{S_T3}, s{S_WAVE}, 16", f"s_add_u32 s{S_T2}, s{S_T2}, s{S_T3}")
        A(f"s_lshl_b32 s{S_T3}, s{S_C}, 8", f"s_add_u32 s{S_T2}, s{S_T2}, s{S_T3}", f"s_lshl_b32 s{S_T3}, s{S_J}, 5", f"s_add_u32 s{S_T2}, s{S_T2}, s{S_T3}")
        A(f"s_mov_b32 s{S_T3}, 0xffff0000")
        for blk in range(nblk):
            A(f"s_waitcnt vmcnt({(nblk - 1 - blk) * 8})" if blk == 0 else "s_waitcnt vmcnt(1)")
            lo = 128 + blk * 8; hi = lo + 4
            for sp in range(8):
                d = (blk * 8 + sp) * 4
                for q in range(4):
                    if sp == 0:
                        A(f"v_lshlrev_b32 v{lo+q}, 16, v{d+q}", f"v_and_b32 v{hi+q}, s{S_T3}, v{d+q}")
                    else:
                        A(f"v_lshlrev_b32 v{160+q}, 16, v{d+q}", f"v_and_b32 v{164+q}, s{S_T3}, v{d+q}")
                if sp:
                    for q in range(4): A(f"v_add_f32 v{lo+q}, v{lo+q}, v{160+q}", f"v_add_f32 v{hi+q}, v{hi+q}, v{164+q}")
            r = 168 + blk * 4
            for q in range(4): A(f"v_cvt_pk_bf16_f32 v{r+q}, v{lo+q}, v{hi+q}")
            A("s_nop 1")
            A(f"v_permlane32_swap_b32 v{r}, v{r+2}", f"v_permlane32_swap_b32 v{r+1}, v{r+3}")
            A(f"s_add_u32 s{S_T1}, s{S_T2}, {blk*32768}")
            A(f"buffer_store_dwordx4 {vr(r,4)}, v{VO}, s[{SRD_OUT}:{SRD_OUT+3}], s{S_T1} offen")
        A("s_waitcnt vmcnt(0)")

    def path(self, lw):
        A = self.A
        nblk = 1 if lw else 2
        self.lock = False
        if lw:
            A.label("L_LW")
            self.srds_rest()
            if self.stage >= 3:
                A("s_memrealtime s[100:101]", "s_waitcnt lgkmcnt(0)", "s_or_b32 s100, s100, 1")
                A(f"v_mov_b32 v{V_EP}, s100", f"v_mov_b32 v{V_EP+1}, s101", f"v_mov_b32 v{V_EP+2}, 0", f"v_mov_b32 v{V_EP+3}, 0", f"v_mov_b32 v{V_EP+6}, 0")
                A(f"s_mov_b64 s[{S_T2}:{S_T3}], exec", "s_mov_b64 exec, 1")
                A(f"global_atomic_cmpswap_x2 v[{V_EP+4}:{V_EP+5}], v{V_EP+6}, v[{V_EP}:{V_EP+3}], s[{S_DBG}:{S_DBG+1}] sc0")
                A(f"s_mov_b64 exec, s[{S_T2}:{S_T3}]")
            self.addr_regs()
        else:
            self.q_slots_setup()
            A(f"s_mov_b32 s{S_KC}, s{S_ROT}" if "norot" not in self.dbg else f"s_mov_b32 s{S_KC}, 0")
            for g in self.q_dma(0): A(*g)
            self.srds_rest()
            self.addr_regs()
            for g in self.q_dma(1): A(*g)
        A(f"s_add_u32 s{S_T0}, s{S_C}, s{S_WAVE}", f"s_and_b32 s{S_T0}, s{S_T0}, 3", f"s_lshl_b32 s{S_WOOFF}, s{S_T0}, 17")
        A(f"s_lshl_b32 s{S_WOLDS}, s{S_WAVE}, 15")
        A(f"s_mov_b32 s{S_KOFF}, {4*8192}", f"s_mov_b32 s{S_VOFF}, {3*8192}")
        self.stamp(1)
        if not lw: A("s_waitcnt vmcnt(12)" if "q0" not in self.dbg else "s_waitcnt vmcnt(0)")
        A("s_barrier")
        rds = self.q_reads(0, 0, nblk)
        if lw:
            for r in rds: A(r)
        else:
            dm = []
            for g in self.q_dma(2): dm.append(g)
            k = 0
            for gi, g in enumerate(dm):
                for r in rds[k:k+8]: A(r)
                k += 8
                A(*g)
            for r in rds[k:]: A(r)
        self.stamp(2)
        for i in range(7):
            self.q_iter(i, nblk, lw)
            if "qst" in self.dbg and i in (0, 1, 2, 4): self.stamp({0: 3, 1: 4, 2: 5, 4: 6}[i])
        self.q_last(nblk, lw)
        self.stamp(3 if "qst" not in self.dbg else 7)
        self.lock = True
        if self.stage == 1:
            self.dump_frags(nblk, lambda b, c: ar(QF(b, c), 4)); A("s_branch L_end"); return
        self.attention(lw)
        self.stamp(5)
        if self.stage == 2:
            A("s_nop 7", "s_nop 7")
            self.normalize(nblk)
            self.dump_frags(nblk, lambda b, c: vr(OFR(b, c), 4))
            self.stamp(6); self.stamp(7)
            self.dump_stamps()
            A("s_branch L_end"); return
        self.tail(lw)
        self.stamp(12)
        self.dump_stamps()
        A("s_branch L_end")

    def build(self):
        A = self.A
        hdr = []
        hdr.append(open("standalone__gqa_block_cached__near_ridge.s.ref").read().split("; Override")[0].rstrip())
        hdr.append(f"; @launch grid=(256,1,1) block=(256,1,1) lds={LDS_BYTES}")
        hdr.append('.amdgcn_target "amdgcn-amd-amdhsa--gfx950"')
        hdr.append(f".text\n.globl {NAME}\n.p2align 8\n.type {NAME},@function\n{NAME}:")
        self.prologue()
        self.path(False)
        self.path(True)
        A.label("L_end")
        A("s_endpgm")
        A.L = check_hazards(A.L, fix=True)
        tail = f""".section .rodata,"a"
.p2align 6
.amdhsa_kernel {NAME}
  .amdhsa_next_free_vgpr 512
  .amdhsa_next_free_sgpr 102
  .amdhsa_accum_offset 256
  .amdhsa_group_segment_fixed_size 0
  .amdhsa_kernarg_size 64
  .amdhsa_user_sgpr_count 2
  .amdhsa_user_sgpr_kernarg_segment_ptr 1
  .amdhsa_system_sgpr_workgroup_id_x 1
.end_amdhsa_kernel
"""
        return "\n".join(hdr) + "\n" + A.text() + tail

if __name__ == "__main__":
    stage = int(sys.argv[1]) if len(sys.argv) > 1 else 3
    out = sys.argv[2] if len(sys.argv) > 2 else "k.s"
    timing = len(sys.argv) > 3 and sys.argv[3] == "t"
    dbg = sys.argv[4].split(",") if len(sys.argv) > 4 else ()
    open(out, "w").write(Gen(stage, timing, dbg).build())
```

```python
import sys, struct
sys.path.insert(0, "dev")
from asmlib import *

NAME = "standalone__gqa_block_cached__near_ridge_kernel"
XOFF = 0; WOFF = XOFF + 28672; QBUF = 45056
RBASE = 98304
KSLOT = [139264, 155648, 122880, 131072]
VSLOT = [147456, 98304, 106496, 114688]
WOREG = [0, 32768, 65536]
SCRATCH = VSLOT[1]
LDS_BYTES = 163840
FLAG1 = 0; FLAG2 = 0x20000; OFRAG = 0x100000; PART = 0x1200000; STAMPS = 0x4000000
SRD_X, SRD_WQ, SRD_K, SRD_V, SRD_WO = 4, 8, 12, 16, 20
S_OUT, S_DBG, S_WS = 24, 26, 28
S_WAVE, S_B, S_H, S_C, S_J, S_ROT, S_KC, S_CNT, S_T0, S_T1 = 30, 31, 32, 33, 34, 35, 36, 37, 38, 39
S_EP = 40
S_T2, S_T3 = 42, 43
KA0, KA1 = 44, 52
SLOT_SRD = [60, 64, 68, 72]
SRD_WS = 60; SRD_OUT = 64
SLOT_BASE = [76, 77, 78, 79]; SLOT_STRIDE = [80, 81, 82, 83]; SLOT_LDS = [84, 85, 86, 87]
S_KOFF, S_VOFF = 88, 89
S_WOOFF, S_WOLDS = 90, 91
S_TS = 92
V_LANE = 255
KADDR = 240; VADDR = 248
VOFFK = 228; VOFFV = 232; VOFFO = 233
V_LA, V_LB = 237, 238
V_T = [252, 253, 254, 239]
SA, SB = 128, 144
PA, PB = 160, 168
WADDR = 128; XADDR = 132; SLOTV = 136; RAWX = 152; RAWW = 156; XADDR2 = 160; WADDR2 = 164
V_ZERO = 192
V_EP = 196
VL16 = 204; W_LO = 205; W_MID = 209
def ACC(blk, db): return blk * 64 + db * 16
def WF(st, ks, db): return st * 64 + (ks * 4 + db) * 4
def XF(st, blk, ks): return 128 + st * 32 + (blk * 4 + ks) * 4
def QF(blk, c): return 128 + blk * 32 + c * 4
def KF(c): return 192 + c * 4
def VF(db, ks): return 224 + (ks * 4 + db) * 4
def OFR(blk, kk): return 128 + blk * 32 + kk * 4
def PFR(o, blk, kk): return (o - 1) * 64 + blk * 32 + kk * 4
def WOF(par, nb): return 192 + par * 16 + nb * 4
QSCALE = 0.08838834764831845 * 1.4426950408889634
def f2u(x): return struct.unpack("<I", struct.pack("<f", x))[0]
MFMA = "v_mfma_f32_32x32x16_bf16"

class Gen:
    def __init__(self, stage=3, timing=False, dbg=()):
        self.A = Asm(); self.stage = stage; self.timing = timing; self.dbg = set(dbg); self.uid = 0

    def lab(self, p):
        self.uid += 1; return f"L_{p}{self.uid}"

    def weave(self, mfmas, gaps, pre=None):
        A = self.A
        for i, (m, g) in enumerate(zip(mfmas, gaps)):
            if pre and i in pre:
                for x in pre[i]: A(x)
            if m: A(m)
            for x in g: A(x)

    def tstamp(self, name):
        order = {"tst": ["T0", "bar0", "st1", "own", "ack1", "poll1", "phA", "phB"], "tst2": ["T0", "phB", "ack2", "poll2", "ld2", "end", "x", "y"]}
        for k, lst in order.items():
            if k in self.dbg and self.timing and name in lst:
                self.A("s_memtime s[100:101]", "s_waitcnt lgkmcnt(0)", f"s_mov_b32 s{S_TS+lst.index(name)}, s100")

    def rstamp(self, slot):
        if "tst2" in self.dbg and self.timing:
            self.A("s_memrealtime s[100:101]", "s_waitcnt lgkmcnt(0)", f"s_mov_b32 s{S_TS+slot}, s100")

    def pstamp(self, idx):
        if "pro" in self.dbg and self.timing:
            self.A("s_memtime s[100:101]", "s_waitcnt lgkmcnt(0)", f"s_mov_b32 s{S_TS+idx}, s100")

    def stamp(self, idx):
        if "pro" in self.dbg and idx != 0: return
        if "tst" in self.dbg or "tst2" in self.dbg: return
        if "qst" in self.dbg and getattr(self, "lock", False): return
        if self.stage >= 3 and "qst" not in self.dbg:
            idx = {0: 0, 2: 1, 3: 2, 5: 3, 10: 4, 11: 5, 7: 6, 12: 7}.get(idx)
            if idx is None: return
        if self.timing:
            self.A("s_memtime s[100:101]", "s_waitcnt lgkmcnt(0)", f"s_mov_b32 s{S_TS+idx}, s100")

    def dump_stamps(self):
        if not self.timing: return
        A = self.A
        A("s_memrealtime s[100:101]", "s_waitcnt lgkmcnt(0)")
        A(f"s_lshl_b32 s{S_T0}, s2, 2", f"s_add_u32 s{S_T0}, s{S_T0}, s{S_WAVE}", f"s_lshl_b32 s{S_T0}, s{S_T0}, 6", f"s_add_u32 s{S_T0}, s{S_T0}, {STAMPS:#x}")
        A(f"v_mov_b32 v20, s{S_T0}")
        for i in range(8): A(f"v_mov_b32 v{4+i}, s{S_TS+i}")
        A(f"v_mov_b32 v12, s3", "v_mov_b32 v13, s100", "v_mov_b32 v14, 0", "v_mov_b32 v15, 0")
        A(f"v_cmp_eq_u32 vcc, 0, v{V_LANE}", "s_and_saveexec_b64 s[100:101], vcc")
        for i in range(3): A(f"global_store_dwordx4 v20, v[{4+4*i}:{7+4*i}], s[{S_WS}:{S_WS+1}] offset:{16*i}")
        A("s_waitcnt vmcnt(0)", "s_mov_b64 exec, s[100:101]")

    def prologue(self):
        A = self.A
        A("s_cmp_ge_u32 s2, 256", "s_cbranch_scc1 L_end")
        if self.timing:
            A("s_memrealtime s[100:101]", "s_waitcnt lgkmcnt(0)", "s_mov_b32 s3, s100")
            self.stamp(0)
        A(f"s_load_dwordx8 s[{KA0}:{KA0+7}], s[0:1], 0", f"s_load_dwordx8 s[{KA1}:{KA1+7}], s[0:1], 32")
        A("v_lshrrev_b32 v1, 6, v0", f"v_and_b32 v{V_LANE}, 63, v0")
        A(f"v_readfirstlane_b32 s{S_WAVE}, v1")
        A(f"s_and_b32 s{S_J}, s2, 7", f"s_lshr_b32 s{S_C}, s2, 3", f"s_and_b32 s{S_C}, s{S_C}, 3", f"s_lshr_b32 s{S_B}, s2, 5")
        A(f"s_lshl_b32 s{S_H}, s{S_J}, 2", f"s_add_u32 s{S_H}, s{S_H}, s{S_C}")
        if "rot8" in self.dbg:
            A(f"s_lshl_b32 s{S_ROT}, s{S_C}, 1", f"s_add_u32 s{S_ROT}, s{S_ROT}, s{S_B}", f"s_and_b32 s{S_ROT}, s{S_ROT}, 7")
        elif "rot4" in self.dbg:
            A(f"s_add_u32 s{S_ROT}, s{S_C}, s{S_B}", f"s_and_b32 s{S_ROT}, s{S_ROT}, 3", f"s_lshl_b32 s{S_ROT}, s{S_ROT}, 1")
        else:
            A(f"s_add_u32 s{S_ROT}, s{S_C}, s{S_B}", f"s_and_b32 s{S_ROT}, s{S_ROT}, 1", f"s_lshl_b32 s{S_ROT}, s{S_ROT}, 2")
        L = V_LANE
        A(f"v_lshrrev_b32 v2, 4, v{L}", f"v_and_b32 v3, 15, v{L}", f"v_and_b32 v4, 31, v{L}", f"v_lshrrev_b32 v5, 5, v{L}")
        A("v_lshrrev_b32 v6, 2, v3", "v_and_b32 v7, 3, v3")
        A("v_lshlrev_b32 v8, 2, v2", "v_xor_b32 v8, v8, v3", "v_lshlrev_b32 v8, 4, v8")
        A(f"v_lshl_add_u32 v{RAWW}, v2, 13, v8")
        for j in range(1, 4): A(f"v_add_u32 v{RAWW+j}, {j*31744}, v{RAWW}")
        A(f"v_and_b32 v9, 7, v{L}", "v_xor_b32 v9, v9, v2", "v_lshlrev_b32 v9, 4, v9", f"v_lshrrev_b32 v10, 3, v{L}")
        A(f"v_lshl_add_u32 v{RAWX}, v10, 10, v9")
        A(f"v_xor_b32 v{RAWX+1}, 64, v{RAWX}", f"v_add_u32 v{RAWX+1}, 7168, v{RAWX+1}")
        A(f"v_add_u32 v{RAWX+2}, 14336, v{RAWX}")
        A(f"v_add_u32 v{RAWX+3}, 14336, v{RAWX+1}")
        self.q_slots_pre()
        for k in range(4): A(f"s_mov_b32 s{SLOT_SRD[k]+3}, 0x20000")
        A("s_waitcnt lgkmcnt(0)")
        self.pstamp(1)
        x, k, v, wq, wo = KA0, KA0+2, KA0+4, KA0+6, KA1
        A(f"s_mul_i32 s{S_T0}, s{S_B}, 229376")
        A(f"s_add_u32 s{SRD_X}, s{x}, s{S_T0}", f"s_addc_u32 s{SRD_X+1}, s{x+1}, 0", f"s_mov_b32 s{SRD_X+2}, 229376", f"s_mov_b32 s{SRD_X+3}, 0x20000")
        A(f"s_lshl_b32 s{S_T0}, s{S_H}, 8")
        A(f"s_add_u32 s{SRD_WQ}, s{wq}, s{S_T0}", f"s_addc_u32 s{SRD_WQ+1}, s{wq+1}, 0", f"s_sub_u32 s{SRD_WQ+2}, 0x400000, s{S_T0}", f"s_mov_b32 s{SRD_WQ+3}, 0x20000")
        A(f"s_cmp_eq_u32 s{S_WAVE}, 3", "s_cbranch_scc1 L_LW")

    def srds_rest(self):
        A = self.A
        x, k, v, wq, wo = KA0, KA0+2, KA0+4, KA0+6, KA1
        A(f"s_lshl_b32 s{S_T0}, s{S_B}, 5", f"s_add_u32 s{S_T0}, s{S_T0}, s{S_H}", f"s_lshl_b32 s{S_T0}, s{S_T0}, 18")
        A(f"s_add_u32 s{SRD_K}, s{k}, s{S_T0}", f"s_addc_u32 s{SRD_K+1}, s{k+1}, 0", f"s_mov_b32 s{SRD_K+2}, 0x40000", f"s_mov_b32 s{SRD_K+3}, 0x20000")
        A(f"s_add_u32 s{SRD_V}, s{v}, s{S_T0}", f"s_addc_u32 s{SRD_V+1}, s{v+1}, 0", f"s_mov_b32 s{SRD_V+2}, 0x40000", f"s_mov_b32 s{SRD_V+3}, 0x20000")
        A(f"s_lshl_b32 s{S_T0}, s{S_J}, 19", f"s_lshl_b32 s{S_T1}, s{S_C}, 8", f"s_add_u32 s{S_T0}, s{S_T0}, s{S_T1}")
        A(f"s_add_u32 s{SRD_WO}, s{wo}, s{S_T0}", f"s_addc_u32 s{SRD_WO+1}, s{wo+1}, 0", f"s_sub_u32 s{SRD_WO+2}, 0x400000, s{S_T0}", f"s_mov_b32 s{SRD_WO+3}, 0x20000")
        A(f"s_mov_b64 s[{S_OUT}:{S_OUT+1}], s[{KA1+2}:{KA1+3}]", f"s_mov_b64 s[{S_DBG}:{S_DBG+1}], s[{KA1+4}:{KA1+5}]", f"s_mov_b64 s[{S_WS}:{S_WS+1}], s[{KA1+6}:{KA1+7}]")

    def addr_regs(self):
        A = self.A
        A(f"v_lshl_add_u32 v{VOFFV}, v2, 8, v8")
        A("v_xor_b32 v9, v3, v2", "v_lshlrev_b32 v9, 4, v9", f"v_lshl_add_u32 v{VOFFK}, v2, 8, v9")
        for j in range(1, 4): A(f"v_xor_b32 v{VOFFK+j}, {j<<6}, v{VOFFK}")
        A(f"v_lshl_add_u32 v{VOFFO}, v2, 10, v8")
        for j in range(1, 4): A(f"v_add_u32 v{VOFFO+j}, {j*3072}, v{VOFFO}")
        A("v_and_b32 v9, 15, v4", "v_xor_b32 v9, v9, v5", "v_lshlrev_b32 v9, 4, v9", "v_lshl_add_u32 v9, v4, 8, v9", f"v_add_u32 v{KADDR}, {RBASE}, v9")
        for c in range(1, 8): A(f"v_xor_b32 v{KADDR+c}, {c<<5}, v{KADDR}")
        A("v_and_b32 v10, 1, v2", "v_lshlrev_b32 v10, 1, v10", "v_lshlrev_b32 v11, 2, v6", "v_or_b32 v10, v10, v11")
        A("v_lshrrev_b32 v11, 1, v7", "v_or_b32 v11, v11, v10", "v_lshlrev_b32 v11, 4, v11")
        A("v_and_b32 v12, 1, v7", "v_lshl_add_u32 v11, v12, 3, v11")
        A("v_lshl_add_u32 v12, v5, 2, v6", "v_lshl_add_u32 v11, v12, 8, v11", f"v_add_u32 v{VADDR}, {RBASE}, v11")
        for d in range(1, 4): A(f"v_xor_b32 v{VADDR+d}, {d<<6}, v{VADDR}")
        A("v_and_b32 v11, 1, v7", "v_or_b32 v11, v11, v10", "v_lshlrev_b32 v11, 4, v11")
        A("v_lshrrev_b32 v12, 1, v7", "v_lshl_add_u32 v11, v12, 3, v11")
        A("v_lshl_add_u32 v12, v5, 3, v6", "v_lshl_add_u32 v11, v12, 8, v11", f"v_add_u32 v{WADDR}, {WOFF}, v11")
        for d in range(1, 4): A(f"v_xor_b32 v{WADDR+d}, {d<<6}, v{WADDR}")
        A("v_lshrrev_b32 v11, 1, v4", "v_and_b32 v11, 7, v11", "v_xor_b32 v11, v11, v5", "v_lshlrev_b32 v11, 4, v11", "v_lshl_add_u32 v11, v4, 7, v11")
        A(f"s_lshl_b32 s{S_T0}, s{S_WAVE}, 13", f"s_add_u32 s{S_T0}, s{S_T0}, {XOFF}", f"v_add_u32 v{XADDR}, s{S_T0}, v11")
        for ks in range(1, 4): A(f"v_xor_b32 v{XADDR+ks}, {ks<<5}, v{XADDR}")
        for r in range(4):
            A(f"v_add_u32 v{XADDR2+r}, {2*QBUF}, v{XADDR+r}", f"v_add_u32 v{WADDR2+r}, {2*QBUF}, v{WADDR+r}")
        for r in range(4): A(f"v_mov_b32 v{V_ZERO+r}, 0")
        A(f"v_mov_b32 v{V_LA}, 0", f"v_mov_b32 v{V_LB}, 0")

    def q_slots_pre(self):
        A = self.A
        for k in range(4):
            A(f"s_lshl_b32 s{S_T0}, s{S_WAVE}, 2", f"s_add_u32 s{S_T0}, s{S_T0}, {k}")
            A(f"s_sub_u32 s{S_T1}, s{S_T0}, 7")
            A(f"s_cmp_lt_u32 s{S_T0}, 7")
            A(f"s_cselect_b32 s{SLOT_STRIDE[k]}, 7, 19")
            A(f"s_cselect_b64 s[{S_T2}:{S_T3}], -1, 0")
            A(f"s_cselect_b32 s{S_T0}, s{S_T0}, s{S_T1}")
            A(f"s_cselect_b32 s{SLOT_BASE[k]}, 15, 17")
            A(f"s_cselect_b32 s{SLOT_LDS[k]}, 0, {WOFF-XOFF}")
            A(f"s_lshl_b32 s{SLOT_STRIDE[k]}, 1, s{SLOT_STRIDE[k]}")
            A(f"s_lshl_b32 s{SLOT_BASE[k]}, s{S_T0}, s{SLOT_BASE[k]}")
            A(f"s_lshl_b32 s{S_T0}, s{S_T0}, 12", f"s_add_u32 s{SLOT_LDS[k]}, s{SLOT_LDS[k]}, s{S_T0}")
            for j in range(4): A(f"v_cndmask_b32 v{SLOTV+4*k+j}, v{RAWW+j}, v{RAWX+j}, s[{S_T2}:{S_T3}]")

    def q_slots_post(self):
        A = self.A
        A(f"s_cmp_lt_u32 s{S_WAVE}, 2")
        for k in range(3):
            for w in range(3): A(f"s_cselect_b32 s{SLOT_SRD[k]+w}, s{SRD_X+w}, s{SRD_WQ+w}")
        A(f"s_cmp_eq_u32 s{S_WAVE}, 0")
        for w in range(3): A(f"s_cselect_b32 s{SLOT_SRD[3]+w}, s{SRD_X+w}, s{SRD_WQ+w}")

    def q_dma(self, buf):
        out = []
        for k in range(4):
            g = []
            lb = None
            if k == 3:
                lb = self.lab("qskip")
                g += [f"s_cmp_eq_u32 s{S_WAVE}, 2", f"s_cbranch_scc1 {lb}"]
            g += [f"s_mul_i32 s{S_T0}, s{S_KC}, s{SLOT_STRIDE[k]}", f"s_add_u32 s{S_T0}, s{S_T0}, s{SLOT_BASE[k]}", f"s_add_u32 m0, s{SLOT_LDS[k]}, {buf*QBUF}", "s_nop 0"]
            for j in range(4):
                g.append(f"buffer_load_dwordx4 v{SLOTV+4*k+j}, s[{SLOT_SRD[k]}:{SLOT_SRD[k]+3}], s{S_T0} offen offset:{j*1024}{' nt' if 'qnt' in self.dbg else ''} lds")
            if lb: g.append(lb + ":")
            out.append(g)
        out.append([f"s_add_u32 s{S_KC}, s{S_KC}, 1", f"s_and_b32 s{S_KC}, s{S_KC}, 7"])
        return out

    def q_reads(self, st, buf, nblk):
        rd = []
        xa, wa, bo = (XADDR, WADDR, buf * QBUF) if buf < 2 else (XADDR2, WADDR2, 0)
        for ks in range(4):
            for blk in range(nblk):
                rd.append(f"ds_read_b128 {ar(XF(st,blk,ks),4)}, v{xa+ks} offset:{bo + blk*4096}")
            for db in range(4):
                for jh in range(2):
                    rd.append(f"ds_read_b64_tr_b16 {ar(WF(st,ks,db)+2*jh,2)}, v{wa+db} offset:{bo + ks*4096 + jh*1024}")
        return rd

    KVSEQ = [("K",0),("V",0),("K",1),("V",1),("K",2),("V",2),("K",3)]

    KVQ = {5: [("K",0), ("V",0), ("K",1)], 6: [("V",1), ("K",2), ("V",2)]}

    def q_iter(self, i, nblk, lw):
        st = i & 1
        mf = []
        for ks in range(4):
            for db in range(4):
                for blk in range(nblk):
                    a = ACC(blk, db)
                    c = "0" if (i == 0 and ks == 0) else vr(a, 16)
                    mf.append(f"{MFMA} {vr(a,16)}, {ar(WF(st,ks,db),4)}, {ar(XF(st,blk,ks),4)}, {c}")
        n = len(mf)
        gaps = [[] for _ in range(n)]
        if not lw: gaps[0].append("s_waitcnt vmcnt(12)" if (i <= 5 and "q0" not in self.dbg) else "s_waitcnt vmcnt(0)")
        gaps[0].append("s_barrier")
        rds = self.q_reads(st ^ 1, (i + 1) % 3, nblk)
        span = n - 4 if not lw else n - 2
        for idx, r in enumerate(rds): gaps[1 + idx * span // len(rds)].append(r)
        if not lw:
            if i + 3 <= 7:
                flat = []
                for g in self.q_dma(i % 3): flat.append(g)
                pos = 1
                for g in flat:
                    pend = []
                    has_branch = any(x.startswith("s_cbranch") for x in g)
                    if has_branch:
                        gaps[pos] += g; pos += 2; continue
                    for x in g:
                        pend.append(x)
                        if x.startswith("buffer_load"):
                            gaps[pos] += pend; pend = []; pos += 2
                    if pend: gaps[min(pos, n - 1)] += pend
        else:
            dm = []
            kvq = self.KVQ if "kvearly" not in self.dbg else {0: [("K",0)], 1: [("V",0)], 2: [("K",1)], 5: [("V",1)], 6: [("K",2), ("V",2)]}
            for kind, t in kvq.get(i, []): dm += self.tile_dma(kind, t % 4, f"{t*8192}")
            if dm:
                per = -(-len(dm) // (n - 2))
                for idx, x in enumerate(dm): gaps[1 + idx // per].append(x)
        self.A("s_waitcnt lgkmcnt(0)")
        self.weave(mf, gaps)

    def q_last(self, nblk, lw):
        A = self.A
        st = 1
        tiles = [(blk, db) for blk in range(nblk) for db in range(4)]
        mf = []
        for blk, db in tiles:
            a = ACC(blk, db)
            for ks in range(4):
                mf.append(f"{MFMA} {vr(a,16)}, {ar(WF(st,ks,db),4)}, {ar(XF(st,blk,ks),4)}, {vr(a,16)}")
        nt = len(tiles)
        conv = []
        for blk, db in tiles:
            a = ACC(blk, db); c = []
            for r in range(a, a + 16): c.append(f"v_mul_f32 v{r}, s{S_T2}, v{r}")
            for u in range(2):
                for pj in range(4):
                    r = a + 8*u + 2*pj
                    c.append(f"v_cvt_pk_bf16_f32 v{r}, v{r}, v{r+1}")
            for u in range(2):
                for pj in range(4):
                    r = a + 8*u + 2*pj
                    c.append(f"v_accvgpr_write_b32 a{QF(blk, 2*db+u)+pj}, v{r}")
            conv.append(c)
        zero = [f"{MFMA} {vr(ACC(blk,db),16)}, {vr(V_ZERO,4)}, {vr(V_ZERO,4)}, 0" for blk, db in tiles]
        A(f"s_mov_b32 s{S_T2}, {f2u(QSCALE):#x}", "s_waitcnt lgkmcnt(0)")
        stream = []
        late = []
        for ti in range(nt):
            for ins in conv[ti]:
                ms = 4 * ti + 3 + 3
                if "accvgpr_write" in ins and tiles[ti][0] == 1: late.append((4 * nt, ins, ti))
                else: stream.append((ms, ins, ti))
        stream += late
        slots = mf + zero
        gaps = [[] for _ in slots]
        pos = 0
        done_tile = [0] * nt
        remaining = [len(c) for c in conv]
        out_m = []; out_g = []
        si = 0
        for s in range(len(mf)):
            g = []
            while si < len(stream) and stream[si][0] <= s and len(g) < 5:
                g.append(stream[si][1]); remaining[stream[si][2]] -= 1; si += 1
            out_m.append(mf[s]); out_g.append(g)
        kb = len(mf) - 3
        if lw:
            dm = self.tile_dma("K", 3, f"{3*8192}")
            for idx, x in enumerate(dm): out_g[idx][0:0] = [x] if idx < kb else []
            assert len(dm) <= kb
        bar = (["s_waitcnt vmcnt(48)" if "kv0" not in self.dbg else "s_waitcnt vmcnt(0)"] if lw else []) + ["s_barrier"]
        self.weave(out_m[:kb], out_g[:kb])
        A(out_m[kb]);
        for x in bar: A(x)
        for c in range(8): A(f"ds_read_b128 {ar(KF(c),4)}, v{KADDR+c} offset:{KSLOT[0]-RBASE}")
        for x in out_g[kb]: A(x)
        self.weave(out_m[kb+1:], out_g[kb+1:])
        zi = 0
        while si < len(stream) or zi < nt:
            if zi < nt and remaining[zi] == 0:
                A(zero[zi]); zi += 1
                continue
            cnt = 0
            while si < len(stream) and cnt < 6:
                A(stream[si][1]); remaining[stream[si][2]] -= 1; si += 1; cnt += 1
                if zi < nt and remaining[zi] == 0: break

    def dump_frags(self, nblk, fn):
        A = self.A
        A(f"s_lshl_b32 s{S_T0}, s2, 16", f"s_lshl_b32 s{S_T1}, s{S_WAVE}, 14", f"s_add_u32 s{S_T0}, s{S_T0}, s{S_T1}", f"s_add_u32 s{S_T0}, s{S_T0}, {OFRAG:#x}")
        A(f"v_lshlrev_b32 v{V_T[2]}, 4, v{V_LANE}", f"v_add_u32 v{V_T[2]}, s{S_T0}, v{V_T[2]}")
        for blk in range(nblk):
            for c in range(8):
                A(f"v_add_u32 v{V_T[3]}, {(blk*8+c)*1024}, v{V_T[2]}")
                A(f"global_store_dwordx4 v{V_T[3]}, {fn(blk,c)}, s[{S_WS}:{S_WS+1}]")
        A("s_waitcnt vmcnt(0)")

    def tile_dma(self, kind, slot, soff, nt=True):
        out = []
        if "nont" in self.dbg: nt = False
        base = (KSLOT if kind == "K" else VSLOT)[slot]
        srd = SRD_K if kind == "K" else SRD_V
        for g in range(2):
            out.append(f"s_add_u32 s{S_T1}, {soff}, {g*4096}" if not soff.isdigit() else f"s_mov_b32 s{S_T1}, {int(soff)+g*4096}")
            out.append(f"s_mov_b32 m0, {base + g*4096}")
            for j in range(4):
                vo = VOFFK + j if kind == "K" else VOFFV
                out.append(f"buffer_load_dwordx4 v{vo}, s[{srd}:{srd+3}], s{S_T1} offen offset:{j*1024}{' nt' if nt else ''} lds")
        res = []
        i = 0
        while i < len(out):
            res += [out[i+1], out[i]] + out[i+2:i+6]; i += 6
        return res

    def sm_items(self, blk, exp_gaps, lo=0, hi=16, extra_add=(), extra_cvt=(), skip=(15,)):
        S = SA if blk == 0 else SB; P = PA if blk == 0 else PB; Lr = V_LA if blk == 0 else V_LB
        out = {}
        def put(g, prio, ins):
            while g in skip: g += 1
            out.setdefault(g, []).append((prio, ins))
        for e in extra_add: put(0, 1, f"v_add_f32 v{Lr}, v{S+e}, v{Lr}")
        for p in extra_cvt: put(0, 2, f"v_cvt_pk_bf16_f32 v{P+p}, v{S+2*p}, v{S+2*p+1}")
        for i in range(lo, hi):
            g = exp_gaps[i - lo]
            put(g, 0, f"v_exp_f32 v{S+i}, v{S+i}")
            put(g + 1, 1, f"v_add_f32 v{Lr}, v{S+i}, v{Lr}")
            if i & 1:
                put(g + 1, 2, f"v_cvt_pk_bf16_f32 v{P+i//2}, v{S+i-1}, v{S+i}")
        return out

    def attn_iter(self, t, lw):
        A = self.A
        tm = t % 4
        do_qk = t + 1 <= 31; do_pv = t >= 0
        do_kr = t + 2 <= 31; do_vr = 0 <= t + 1 <= 31
        def qk(blk):
            S = SA if blk == 0 else SB
            return [f"{MFMA} {vr(S,16)}, {ar(KF(c),4)}, {ar(QF(blk,c),4)}, {'0' if c == 0 else vr(S,16)}" for c in range(8)] if do_qk else [None]*8
        def pv(blk):
            P = PA if blk == 0 else PB
            return [f"{MFMA} {vr(ACC(blk,db),16)}, {ar(VF(db,ks),4)}, {vr(P+4*ks,4)}, {vr(ACC(blk,db),16)}" for ks in range(2) for db in range(4)] if do_pv else [None]*8
        mf = qk(0) + pv(0) + (qk(1) + pv(1) if not lw else [None]*16)
        gaps = [[] for _ in range(33)]
        def merge(d):
            for g, lst in d.items():
                if g < 32: gaps[g] += lst
        BEXP = [28,29,30,31] + list(range(0,12))
        AEXP = [12,13,13,14] + list(range(16,28))
        if not lw:
            if t >= 0: merge(self.sm_items(1, BEXP[4:], lo=4, hi=16, extra_add=(3,), extra_cvt=(1,)))
            if do_qk:
                merge(self.sm_items(0, AEXP))
                merge(self.sm_items(1, BEXP[:4], lo=0, hi=4))
        else:
            if do_qk: merge(self.sm_items(0, AEXP))
        gl = [[ins for _, ins in sorted(g, key=lambda x: x[0])] for g in gaps]
        mem = [[] for _ in range(33)]
        kslot = (t + 2) % 4; vslot = (t + 1) % 4
        kr = [f"ds_read_b128 {ar(KF(c),4)}, v{KADDR+c} offset:{KSLOT[kslot]-RBASE}" for c in range(8)] if do_kr else []
        vrd = []
        if do_vr:
            for ks in range(2):
                for db in range(4):
                    for jh in range(2):
                        vrd.append(f"ds_read_b64_tr_b16 {ar(VF(db,ks)+2*jh,2)}, v{VADDR+db} offset:{VSLOT[vslot]-RBASE + ks*4096 + jh*2048}")
        if not lw:
            for c, r in enumerate(kr): mem[16 + c].append(r)
            for i, r in enumerate(vrd): mem[24 + i // 2].append(r)
        else:
            for c, r in enumerate(kr): mem[16 + c // 2].append(r)
            for i, r in enumerate(vrd): mem[20 + i // 4].append(r)
        bar = []
        if lw:
            w = ({29: 24, 30: 24} if self.stage >= 3 else {28: 24, 29: 8, 30: 0}).get(t, 32)
            if "kv0" in self.dbg: w = 0
            if t <= 30: bar.append(f"s_waitcnt vmcnt({w})")
        bar.append("s_barrier")
        if "dly" in self.dbg: bar += ["s_nop 15"] * 6
        if "kv16" in self.dbg and lw: bar = [x.replace("vmcnt(32)", "vmcnt(16)").replace("vmcnt(24)", "vmcnt(8)") for x in bar]
        mem[15] = bar
        if lw and t >= 0:
            dm = []
            if t <= 27:
                dm += self.tile_dma("K", tm, f"s{S_KOFF}") + self.tile_dma("V", (t + 3) % 4, f"s{S_VOFF}")
                dm += [f"s_add_u32 s{S_KOFF}, s{S_KOFF}, 8192", f"s_add_u32 s{S_VOFF}, s{S_VOFF}, 8192"]
            elif t == 28:
                dm += self.tile_dma("V", (t + 3) % 4, f"s{S_VOFF}")
                if self.stage >= 3: dm += self.wo_tile_dma(3, 0)
            elif self.stage >= 3:
                dm += self.wo_tile_dma(3, t - 28)
            if dm:
                per = -(-len(dm) // 14)
                for i, x in enumerate(dm): mem[i // per].append(x)
        if (not lw) and self.stage >= 3 and (t == -1 or (tm == 0 and 0 <= t <= 24)):
            dm = self.wo_group_dma()
            for i, x in enumerate(dm): mem[1 + i // 3].append(x)
        if t == 31 and self.stage >= 3:
            A(f"v_mov_b32 v{V_EP+6}, 0", f"global_load_dwordx2 v[{V_EP}:{V_EP+1}], v{V_EP+6}, s[{S_DBG}:{S_DBG+1}] sc1")
        if do_qk: A("s_waitcnt lgkmcnt(15)" if t >= 0 else "s_waitcnt lgkmcnt(0)")
        for g in range(32):
            if g == 8 and do_pv: A("s_waitcnt lgkmcnt(0)")
            if mf[g]: A(mf[g])
            for x in mem[g]: A(x)
            for x in gl[g]: A(x)

    def wo_tile_dma(self, o, tile):
        out = []
        for g in range(2):
            out.append(f"s_mov_b32 m0, {KSLOT[tile] + g*4096}")
            out.append(f"s_add_u32 s{S_T1}, s{S_WOOFF}, {tile*32768 + g*16384}")
            for j in range(4):
                out.append(f"buffer_load_dwordx4 v{VOFFO+j}, s[{SRD_WO}:{SRD_WO+3}], s{S_T1} offen offset:{j*1024}{' nt' if 'wont' in self.dbg else ''} lds")
        return out

    def wo_group_dma(self):
        out = [f"s_mov_b32 m0, s{S_WOLDS}", f"s_add_u32 s{S_WOLDS}, s{S_WOLDS}, 4096"]
        for j in range(4):
            out.append(f"buffer_load_dwordx4 v{VOFFO+j}, s[{SRD_WO}:{SRD_WO+3}], s{S_WOOFF} offen offset:{j*1024}{' nt' if 'wont' in self.dbg else ''} lds")
        out.append(f"s_add_u32 s{S_WOOFF}, s{S_WOOFF}, 16384")
        return out

    def attention(self, lw):
        A = self.A
        tag = "LW" if lw else "CW"
        self.attn_iter(-1, lw)
        self.stamp(4)
        A(f"s_mov_b32 s{S_CNT}, 0")
        A(".p2align 4")
        A.label(f"L_attn_{tag}")
        start = len(A.L)
        for t in range(4): self.attn_iter(t, lw)
        body = A.L[start:]
        check_hazards(body + body, fix=False, name="attn loop " + tag)
        A(f"s_add_u32 s{S_CNT}, s{S_CNT}, 1", f"s_cmp_lt_u32 s{S_CNT}, 7", f"s_cbranch_scc1 L_attn_{tag}")
        for t in range(28, 32): self.attn_iter(t, lw)

    def l_combine(self, nblk):
        A = self.A
        R = [252, 254]
        for blk in range(nblk):
            Lr = V_LA if blk == 0 else V_LB
            A(f"v_mov_b32 v{R[blk]}, v{Lr}")
        A("s_nop 1")
        for blk in range(nblk):
            Lr = V_LA if blk == 0 else V_LB
            A(f"v_permlane32_swap_b32 v{Lr}, v{R[blk]}")
        for blk in range(nblk):
            Lr = V_LA if blk == 0 else V_LB
            A(f"v_add_f32 v{Lr}, v{Lr}, v{R[blk]}")
        for blk in range(nblk):
            Lr = V_LA if blk == 0 else V_LB
            A(f"v_rcp_f32 v{R[blk]}, v{Lr}")
        A("s_nop 0")

    def norm_block(self, blk):
        R = [252, 254][blk]
        out = []
        for db in range(4):
            a = ACC(blk, db)
            for r in range(a, a + 16, 2): out.append(f"v_pk_mul_f32 v[{r}:{r+1}], v[{r}:{r+1}], v[{R}:{R+1}] op_sel_hi:[1,0]")
            for u in range(2):
                for pj in range(4):
                    r = a + 8*u + 2*pj
                    out.append(f"v_cvt_pk_bf16_f32 v{OFR(blk, 2*db+u)+pj}, v{r}, v{r+1}")
        return out

    def normalize(self, nblk):
        self.l_combine(nblk)
        for blk in range(nblk):
            for x in self.norm_block(blk): self.A(x)

    def poll(self, nflags, vaddr_reg):
        A = self.A
        lp = self.lab("poll"); done = self.lab("polld")
        A(f"s_mov_b64 s[{S_T2}:{S_T3}], exec", f"s_mov_b64 exec, {(1 << nflags) - 1}")
        A(f"s_mov_b32 s{S_CNT}, 0")
        A.label(lp)
        A(f"buffer_load_dwordx2 v[{V_EP+2}:{V_EP+3}], v{vaddr_reg}, s[{SRD_WS}:{SRD_WS+3}], 0 offen sc1")
        A("s_waitcnt vmcnt(0)")
        A(f"v_cmp_ne_u64 vcc, s[{S_EP}:{S_EP+1}], v[{V_EP+2}:{V_EP+3}]")
        A(f"s_add_u32 s{S_CNT}, s{S_CNT}, 1", f"s_cmp_gt_u32 s{S_CNT}, 0x40000", f"s_cbranch_scc1 {done}")
        A(f"s_cbranch_vccnz {lp}")
        A.label(done)
        A(f"s_mov_b64 exec, s[{S_T2}:{S_T3}]")

    def wo_reads(self, o, kk, par):
        reg = [W_LO, W_LO, W_MID, VADDR][o]
        t = kk >> 1
        imm = [t * 8192, 32768 + t * 8192, t * 8192, KSLOT[t] - RBASE][o] + (kk & 1) * 4096
        return [f"ds_read_b64_tr_b16 {ar(WOF(par, nb) + 2*jh, 2)}, v{reg+nb} offset:{imm + jh*2048}" for nb in range(4) for jh in range(2)]

    def oproj_steps(self, steps, pre=None, fill=None, first_c0=()):
        A = self.A
        pre = pre or {}; fill = fill or {}
        for si, (o, kk, blks) in enumerate(steps):
            par = (self.opar + si) & 3
            mf = []
            for nb in range(4):
                for blk in blks:
                    a = ACC(blk, nb)
                    b = vr(OFR(blk, kk), 4) if o == 0 else ar(PFR(o, blk, kk), 4)
                    c = "0" if (si, blk) in first_c0 else vr(a, 16)
                    mf.append(f"{MFMA} {vr(a,16)}, {ar(WOF(par, nb),4)}, {b}, {c}")
            nxt = []
            if si + 2 < len(steps): nxt = self.wo_reads(steps[si+2][0], steps[si+2][1], (par + 2) & 3)
            elif self.onext and si + 2 - len(steps) < len(self.onext):
                o2, k2 = self.onext[si + 2 - len(steps)]; nxt = self.wo_reads(o2, k2, (par + 2) & 3)
            gaps = [[] for _ in mf]
            for i, r in enumerate(nxt): gaps[i * len(mf) // 8].append(r)
            f = fill.get(si, [])
            for i, x in enumerate(f): gaps[min(len(mf) - 1, i * len(mf) // max(1, len(f)))].append(x)
            for x in pre.get(si, []): A(x)
            has_next = (si + 1 < len(steps)) or bool(self.onext)
            A("s_waitcnt lgkmcnt(8)" if has_next else "s_waitcnt lgkmcnt(0)")
            self.weave(mf, gaps)
        self.opar = (self.opar + len(steps)) & 3

    def flag_store(self, base):
        A = self.A
        A(f"s_lshl_b32 s{S_T0}, s2, 2", f"s_add_u32 s{S_T0}, s{S_T0}, s{S_WAVE}", f"s_lshl_b32 s{S_T0}, s{S_T0}, 7", f"s_add_u32 s{S_T0}, s{S_T0}, {base}", f"v_mov_b32 v{V_EP+6}, s{S_T0}")
        A(f"s_mov_b64 s[{S_T2}:{S_T3}], exec", "s_mov_b64 exec, 1")
        A(f"buffer_store_dwordx2 v[{V_EP}:{V_EP+1}], v{V_EP+6}, s[{SRD_WS}:{SRD_WS+3}], 0 offen sc1")
        A(f"s_mov_b64 exec, s[{S_T2}:{S_T3}]")

    def stores(self, base_sgpr, blk, first_reg):
        out = []
        for half in range(2):
            out.append(f"s_add_u32 s{S_T1}, s{base_sgpr}, {(blk*8 + half*4)*1024}")
            for q in range(4):
                out.append(f"buffer_store_dwordx4 {vr(first_reg + (half*4+q)*4, 4)}, v{VL16}, s[{SRD_WS}:{SRD_WS+3}], s{S_T1} offen offset:{q*1024} sc1")
        return out

    def tail(self, lw):
        A = self.A
        nblk = 1 if lw else 2
        blks = list(range(nblk))
        S_PUB = 76; S_PART = 77
        A(f"s_mov_b32 s{SRD_WS}, s{S_WS}", f"s_mov_b32 s{SRD_WS+1}, s{S_WS+1}", f"s_mov_b32 s{SRD_WS+2}, 0x10000000", f"s_mov_b32 s{SRD_WS+3}, 0x20000")
        A(f"s_mov_b32 s{SRD_OUT}, s{S_OUT}", f"s_mov_b32 s{SRD_OUT+1}, s{S_OUT+1}", f"s_mov_b32 s{SRD_OUT+2}, {8*224*512*2}", f"s_mov_b32 s{SRD_OUT+3}, 0x20000")
        A(f"v_lshlrev_b32 v{VL16}, 4, v{V_LANE}", f"s_lshl_b32 s{S_T0}, s{S_WAVE}, 14", f"v_add_u32 v{VL16}, s{S_T0}, v{VL16}")
        for nb in range(4):
            A(f"v_subrev_u32 v{W_LO+nb}, {RBASE}, v{VADDR+nb}")
            A(f"v_add_u32 v{W_MID+nb}, 65536, v{W_LO+nb}")
        A(f"s_lshl_b32 s{S_PUB}, s2, 16", f"s_add_u32 s{S_PART}, s{S_PUB}, {PART:#x}", f"s_add_u32 s{S_PUB}, s{S_PUB}, {OFRAG:#x}")
        self.l_combine(nblk)
        self.tstamp("T0")
        self.rstamp(6)
        for blk in blks:
            for x in self.norm_block(blk): A(x)
            for x in self.stores(S_PUB, blk, OFR(blk, 0)): A(x)
        self.tstamp("st1")
        A(f"s_waitcnt vmcnt({8*nblk})", "s_barrier")
        for r in self.wo_reads(0, 0, 0) + self.wo_reads(0, 1, 1): A(r)
        self.tstamp("bar0")
        self.stamp(10)
        lp = self.lab("ep"); dn = self.lab("epd")
        A(f"s_mov_b32 s{S_CNT}, 0")
        A.label(lp)
        A(f"v_readfirstlane_b32 s{S_EP}, v{V_EP}", f"v_readfirstlane_b32 s{S_EP+1}, v{V_EP+1}")
        A("s_nop 3", f"s_or_b32 s{S_T0}, s{S_EP}, s{S_EP+1}", f"s_cbranch_scc1 {dn}")
        A(f"s_add_u32 s{S_CNT}, s{S_CNT}, 1", f"s_cmp_gt_u32 s{S_CNT}, 0x40000", f"s_cbranch_scc1 {dn}")
        A(f"global_load_dwordx2 v[{V_EP}:{V_EP+1}], v{V_EP+6}, s[{S_DBG}:{S_DBG+1}] sc1", "s_waitcnt vmcnt(0)", f"s_branch {lp}")
        A.label(dn)
        self.opar = 0
        self.onext = [(1, 0), (1, 1)]
        self.oproj_steps([(0, kk, blks) for kk in range(8)], first_c0={(0, b) for b in blks})
        self.tstamp("own")
        A("s_waitcnt vmcnt(0)")
        self.tstamp("ack1")
        self.rstamp(7)
        self.flag_store(FLAG1)
        A(f"v_add_u32 v{V_EP+6}, 1, v{V_LANE}", f"v_lshlrev_b32 v{V_EP+6}, 3, v{V_EP+6}", f"v_xor_b32 v{V_EP+6}, s2, v{V_EP+6}", f"v_lshlrev_b32 v{V_EP+6}, 2, v{V_EP+6}")
        A(f"v_add_u32 v{V_EP+6}, s{S_WAVE}, v{V_EP+6}", f"v_lshlrev_b32 v{V_EP+6}, 7, v{V_EP+6}")
        self.poll(3, V_EP + 6)
        self.tstamp("poll1")
        self.stamp(11)
        PB = [78, 79, 80]
        for o in range(1, 4):
            A(f"s_add_u32 s{S_T0}, s{S_C}, {o}", f"s_and_b32 s{S_T0}, s{S_T0}, 3", f"s_lshl_b32 s{S_T0}, s{S_T0}, 3", f"s_andn2_b32 s{S_T1}, s2, 24", f"s_or_b32 s{S_T0}, s{S_T0}, s{S_T1}")
            A(f"s_lshl_b32 s{S_T0}, s{S_T0}, 16", f"s_add_u32 s{PB[o-1]}, s{S_T0}, {OFRAG:#x}")
        for blk in blks:
            for o in range(1, 4):
                for half in range(2):
                    A(f"s_add_u32 s{S_T1}, s{PB[o-1]}, {(blk*8 + half*4)*1024}")
                    for q in range(4):
                        A(f"buffer_load_dwordx4 {ar(PFR(o, blk, half*4+q),4)}, v{VL16}, s[{SRD_WS}:{SRD_WS+3}], s{S_T1} offen offset:{q*1024} sc1")
        total = 24 * nblk
        stepsA = [(o, kk, [0]) for o in range(1, 4) for kk in range(8)]
        preA = {8 * (o - 1): [f"s_waitcnt vmcnt({total - 8 * o})"] for o in range(1, 4)}
        self.onext = [(1, 0), (1, 1)] if nblk == 2 else None
        self.oproj_steps(stepsA, pre=preA)
        self.tstamp("phA")
        def pack(blk):
            out = []
            for nb in range(4):
                a = ACC(blk, nb)
                for u in range(2):
                    d = 128 + (blk * 8 + nb * 2 + u) * 4
                    for pj in range(4): out.append(f"v_cvt_pk_bf16_f32 v{d+pj}, v{a+8*u+2*pj}, v{a+8*u+2*pj+1}")
            return out
        if nblk == 2:
            stepsB = [(o, kk, [1]) for o in range(1, 4) for kk in range(8)]
            preB = {8 * (o - 1): [f"s_waitcnt vmcnt({24 - 8 * o})"] for o in range(1, 3)}
            preB[16] = ["s_waitcnt vmcnt(0)"]
            pk = pack(0); st = self.stores(S_PART, 0, 128)
            fill = {}
            for i in range(4): fill[4 + i] = pk[8*i:8*i+8]
            fill[16] = st[:5]; fill[17] = st[5:]
            self.onext = None
            self.oproj_steps(stepsB, pre=preB, fill=fill)
            A("s_nop 7", "s_nop 7")
            for x in pack(1): A(x)
            for x in self.stores(S_PART, 1, 128 + 32): A(x)
        else:
            A("s_nop 7", "s_nop 7")
            for x in pack(0): A(x)
            for x in self.stores(S_PART, 0, 128): A(x)
        self.stamp(7)
        self.tstamp("phB")
        A("s_waitcnt vmcnt(0)")
        self.tstamp("ack2")
        self.flag_store(FLAG2)
        A(f"s_andn2_b32 s{S_T0}, s2, 7", f"v_add_u32 v{V_EP+6}, s{S_T0}, v{V_LANE}", f"v_lshlrev_b32 v{V_EP+6}, 2, v{V_EP+6}", f"v_add_u32 v{V_EP+6}, s{S_WAVE}, v{V_EP+6}")
        A(f"v_lshlrev_b32 v{V_EP+6}, 7, v{V_EP+6}", f"v_add_u32 v{V_EP+6}, {FLAG2}, v{V_EP+6}")
        A(f"s_andn2_b32 s{S_T0}, s2, 7", f"s_lshl_b32 s{S_T0}, s{S_T0}, 16", f"s_lshl_b32 s{S_T1}, s{S_J}, 10", f"s_add_u32 s{S_T0}, s{S_T0}, s{S_T1}", f"s_add_u32 s{S_PUB}, s{S_T0}, {PART:#x}")
        VO = W_LO
        A(f"v_and_b32 v{VO}, 31, v{V_LANE}", f"v_lshlrev_b32 v{VO}, 10, v{VO}", f"v_lshrrev_b32 v{VO+1}, 5, v{V_LANE}", f"v_lshl_add_u32 v{VO}, v{VO+1}, 4, v{VO}")
        A(f"s_mul_i32 s{S_PART}, s{S_B}, {224*1024}", f"s_lshl_b32 s{S_T1}, s{S_WAVE}, 16", f"s_add_u32 s{S_PART}, s{S_PART}, s{S_T1}")
        A(f"s_lshl_b32 s{S_T1}, s{S_C}, 8", f"s_add_u32 s{S_PART}, s{S_PART}, s{S_T1}", f"s_lshl_b32 s{S_T1}, s{S_J}, 5", f"s_add_u32 s{S_PART}, s{S_PART}, s{S_T1}")
        self.poll(8, V_EP + 6)
        self.tstamp("poll2")
        for blk in blks:
            for sp in range(8):
                d = (blk * 8 + sp) * 4
                A(f"s_add_u32 s{S_T1}, s{S_PUB}, {sp*65536 + blk*8192}")
                A(f"buffer_load_dwordx4 {vr(d,4)}, v{VL16}, s[{SRD_WS}:{SRD_WS+3}], s{S_T1} offen sc1")
        A(f"s_mov_b32 s{S_T3}, 0xffff0000")
        if "tst2" in self.dbg:
            A("s_waitcnt vmcnt(0)"); self.tstamp("ld2")
        for blk in blks:
            lo = 128 + blk * 8; hi = lo + 4
            for sp in range(8):
                d = (blk * 8 + sp) * 4
                left = (nblk - blk) * 8 - sp - 1 + (1 if blk == 1 else 0)
                if sp in (0, 4): A(f"s_waitcnt vmcnt({(nblk - blk) * 8 - sp - 4 + (1 if blk == 1 else 0)})")
                for q in range(4):
                    if sp == 0:
                        A(f"v_lshlrev_b32 v{lo+q}, 16, v{d+q}", f"v_and_b32 v{hi+q}, s{S_T3}, v{d+q}")
                    else:
                        A(f"v_lshlrev_b32 v{160+q}, 16, v{d+q}", f"v_and_b32 v{164+q}, s{S_T3}, v{d+q}")
                if sp:
                    for q in range(4): A(f"v_add_f32 v{lo+q}, v{lo+q}, v{160+q}", f"v_add_f32 v{hi+q}, v{hi+q}, v{164+q}")
            r = 168 + blk * 4
            for q in range(4): A(f"v_cvt_pk_bf16_f32 v{r+q}, v{lo+q}, v{hi+q}")
            A("s_nop 1")
            A(f"v_permlane32_swap_b32 v{r}, v{r+2}", f"v_permlane32_swap_b32 v{r+1}, v{r+3}")
            A(f"s_add_u32 s{S_T1}, s{S_PART}, {blk*32768}")
            A(f"buffer_store_dwordx4 {vr(r,4)}, v{VO}, s[{SRD_OUT}:{SRD_OUT+3}], s{S_T1} offen")
        A("s_waitcnt vmcnt(0)")

    def path(self, lw):
        A = self.A
        nblk = 1 if lw else 2
        self.lock = False
        if lw:
            A.label("L_LW")
            if "nocodepf" not in self.dbg:
                A("s_getpc_b64 s[100:101]")
                A.label("L_pc0")
                A(f"s_sub_u32 s100, s100, L_pc0-{NAME}", "s_subb_u32 s101, s101, 0")
                A(f"v_lshlrev_b32 v20, 7, v{V_LANE}")
                for n in range(6):
                    A(f"v_min_u32 v22, L_end-{NAME}, v20", f"global_load_dword v21, v22, s[100:101]")
                    if n < 5: A("v_add_u32 v20, 8192, v20")
            self.srds_rest()
            if self.stage >= 3:
                lb = self.lab("noep")
                A("s_cmp_lg_u32 s2, 0", f"s_cbranch_scc1 {lb}")
                A("s_memrealtime s[100:101]", "s_waitcnt lgkmcnt(0)", "s_or_b32 s100, s100, 1")
                A(f"v_mov_b32 v{V_EP}, s100", f"v_mov_b32 v{V_EP+1}, s101", f"v_mov_b32 v{V_EP+6}, 0")
                A(f"s_mov_b64 s[{S_T2}:{S_T3}], exec", "s_mov_b64 exec, 1")
                A(f"global_store_dwordx2 v{V_EP+6}, v[{V_EP}:{V_EP+1}], s[{S_DBG}:{S_DBG+1}] sc1")
                A(f"s_mov_b64 exec, s[{S_T2}:{S_T3}]")
                A.label(lb)
            self.addr_regs()
        else:
            self.q_slots_post()
            A(f"s_mov_b32 s{S_KC}, s{S_ROT}" if "norot" not in self.dbg else f"s_mov_b32 s{S_KC}, 0")
            self.pstamp(2)
            for g in self.q_dma(0): A(*g)
            self.pstamp(3)
            self.srds_rest()
            self.addr_regs()
            self.pstamp(4)
            if "c0only" in self.dbg:
                A("s_waitcnt vmcnt(0)")
                self.pstamp(5)
                for g in self.q_dma(1): A(*g)
            else:
                for g in self.q_dma(1): A(*g)
                self.pstamp(5)
        A(f"s_add_u32 s{S_T0}, s{S_C}, s{S_WAVE}", f"s_and_b32 s{S_T0}, s{S_T0}, 3", f"s_lshl_b32 s{S_WOOFF}, s{S_T0}, 17")
        A(f"s_lshl_b32 s{S_WOLDS}, s{S_WAVE}, 15")
        A(f"s_mov_b32 s{S_KOFF}, {4*8192}", f"s_mov_b32 s{S_VOFF}, {3*8192}")
        self.stamp(1)
        if not lw: A("s_waitcnt vmcnt(12)" if "q0" not in self.dbg else "s_waitcnt vmcnt(0)")
        self.pstamp(6)
        A("s_barrier")
        self.pstamp(7)
        rds = self.q_reads(0, 0, nblk)
        if lw:
            for r in rds: A(r)
        else:
            dm = []
            for g in self.q_dma(2): dm.append(g)
            k = 0
            for gi, g in enumerate(dm):
                for r in rds[k:k+8]: A(r)
                k += 8
                A(*g)
            for r in rds[k:]: A(r)
        self.stamp(2)
        for i in range(7):
            self.q_iter(i, nblk, lw)
            if "qst" in self.dbg and i in (0, 1, 2, 4): self.stamp({0: 3, 1: 4, 2: 5, 4: 6}[i])
        self.q_last(nblk, lw)
        self.stamp(3 if "qst" not in self.dbg else 7)
        self.lock = True
        if self.stage == 1:
            self.dump_frags(nblk, lambda b, c: ar(QF(b, c), 4)); A("s_branch L_end"); return
        self.attention(lw)
        self.stamp(5)
        if self.stage == 2:
            A("s_nop 7", "s_nop 7")
            self.normalize(nblk)
            self.dump_frags(nblk, lambda b, c: vr(OFR(b, c), 4))
            self.stamp(6); self.stamp(7)
            self.dump_stamps()
            A("s_branch L_end"); return
        self.tail(lw)
        self.tstamp("end")
        self.stamp(12)
        self.dump_stamps()
        A("s_branch L_end")

    def build(self):
        A = self.A
        hdr = []
        hdr.append(open("standalone__gqa_block_cached__near_ridge.s.ref").read().split("; Override")[0].rstrip())
        hdr.append(f"; @launch grid=(256,1,1) block=(256,1,1) lds={LDS_BYTES}")
        hdr.append('.amdgcn_target "amdgcn-amd-amdhsa--gfx950"')
        hdr.append(f".text\n.globl {NAME}\n.p2align 8\n.type {NAME},@function\n{NAME}:")
        self.prologue()
        self.path(False)
        self.path(True)
        A.label("L_end")
        A("s_endpgm")
        A.L = check_hazards(A.L, fix=True)
        tail = f""".section .rodata,"a"
.p2align 6
.amdhsa_kernel {NAME}
  .amdhsa_next_free_vgpr 512
  .amdhsa_next_free_sgpr 102
  .amdhsa_accum_offset 256
  .amdhsa_group_segment_fixed_size 0
  .amdhsa_kernarg_size 64
  .amdhsa_user_sgpr_count 2
  .amdhsa_user_sgpr_kernarg_segment_ptr 1
  .amdhsa_system_sgpr_workgroup_id_x 1
.end_amdhsa_kernel
"""
        return "\n".join(hdr) + "\n" + A.text() + tail

if __name__ == "__main__":
    stage = int(sys.argv[1]) if len(sys.argv) > 1 else 3
    out = sys.argv[2] if len(sys.argv) > 2 else "k.s"
    timing = len(sys.argv) > 3 and sys.argv[3] == "t"
    dbg = sys.argv[4].split(",") if len(sys.argv) > 4 else ()
    open(out, "w").write(Gen(stage, timing, dbg).build())
```

```python
import sys, struct
sys.path.insert(0, "dev")
from asmlib import *

NAME = "standalone__gqa_block_cached__near_ridge_kernel"
XOFF = 0; WOFF = XOFF + 28672; QBUF = 45056
RBASE = 98304
KSLOT = [139264, 155648, 122880, 131072]
VSLOT = [147456, 98304, 106496, 114688]
WOREG = [0, 32768, 65536]
SCRATCH = VSLOT[1]
LDS_BYTES = 163840
FLAG1 = 0; FLAG1B = 0x10000; FLAG2 = 0x20000; OFRAG = 0x100000; PART = 0x1200000; STAMPS = 0x4000000
SRD_X, SRD_WQ, SRD_K, SRD_V, SRD_WO = 4, 8, 12, 16, 20
S_OUT, S_DBG, S_WS = 24, 26, 28
S_WAVE, S_B, S_H, S_C, S_J, S_ROT, S_KC, S_CNT, S_T0, S_T1 = 30, 31, 32, 33, 34, 35, 36, 37, 38, 39
S_EP = 40
S_T2, S_T3 = 42, 43
KA0, KA1 = 44, 52
SLOT_SRD = [60, 64, 68, 72]
SRD_WS = 60; SRD_OUT = 64
SLOT_BASE = [76, 77, 78, 79]; SLOT_STRIDE = [80, 81, 82, 83]; SLOT_LDS = [84, 85, 86, 87]
S_KOFF, S_VOFF = 88, 89
S_WOOFF, S_WOLDS = 90, 91
S_TS = 92
V_LANE = 255
KADDR = 240; VADDR = 248
VOFFK = 228; VOFFV = 232; VOFFO = 233
V_LA, V_LB = 237, 238
V_T = [252, 253, 254, 239]
SA, SB = 128, 144
PA, PB = 160, 168
WADDR = 128; XADDR = 132; SLOTV = 136; RAWX = 152; RAWW = 156; XADDR2 = 160; WADDR2 = 164
V_ZERO = 192
V_EP = 196
VL16 = 204; W_LO = 205; W_MID = 209
def ACC(blk, db): return blk * 64 + db * 16
def WF(st, ks, db): return st * 64 + (ks * 4 + db) * 4
def XF(st, blk, ks): return 128 + st * 32 + (blk * 4 + ks) * 4
def QF(blk, c): return 128 + blk * 32 + c * 4
def KF(c): return 192 + c * 4
def VF(db, ks): return 224 + (ks * 4 + db) * 4
def OFR(blk, kk): return 128 + blk * 32 + kk * 4
def PFR(o, blk, kk): return (o - 1) * 64 + blk * 32 + kk * 4
def WOF(par, nb): return 192 + par * 16 + nb * 4
QSCALE = 0.08838834764831845 * 1.4426950408889634
def f2u(x): return struct.unpack("<I", struct.pack("<f", x))[0]
MFMA = "v_mfma_f32_32x32x16_bf16"

class Gen:
    def __init__(self, stage=3, timing=False, dbg=()):
        self.A = Asm(); self.stage = stage; self.timing = timing; self.dbg = set(dbg); self.uid = 0

    def lab(self, p):
        self.uid += 1; return f"L_{p}{self.uid}"

    def weave(self, mfmas, gaps, pre=None):
        A = self.A
        for i, (m, g) in enumerate(zip(mfmas, gaps)):
            if pre and i in pre:
                for x in pre[i]: A(x)
            if m: A(m)
            for x in g: A(x)

    def tstamp(self, name):
        order = {"tst": ["T0", "bar0", "st1", "own", "ack1", "poll1", "phA", "phB"], "tst2": ["T0", "phB", "ack2", "poll2", "ld2", "end", "x", "y"]}
        for k, lst in order.items():
            if k in self.dbg and self.timing and name in lst:
                self.A("s_memtime s[100:101]", "s_waitcnt lgkmcnt(0)", f"s_mov_b32 s{S_TS+lst.index(name)}, s100")

    def rstamp(self, slot):
        if "tst2" in self.dbg and self.timing:
            self.A("s_memrealtime s[100:101]", "s_waitcnt lgkmcnt(0)", f"s_mov_b32 s{S_TS+slot}, s100")

    def pstamp(self, idx):
        if "pro" in self.dbg and self.timing:
            self.A("s_memtime s[100:101]", "s_waitcnt lgkmcnt(0)", f"s_mov_b32 s{S_TS+idx}, s100")

    def stamp(self, idx):
        if "pro" in self.dbg and idx != 0: return
        if "tst" in self.dbg or "tst2" in self.dbg: return
        if "qst" in self.dbg and getattr(self, "lock", False): return
        if self.stage >= 3 and "qst" not in self.dbg:
            idx = {0: 0, 2: 1, 3: 2, 5: 3, 10: 4, 11: 5, 7: 6, 12: 7}.get(idx)
            if idx is None: return
        if self.timing:
            self.A("s_memtime s[100:101]", "s_waitcnt lgkmcnt(0)", f"s_mov_b32 s{S_TS+idx}, s100")

    def dump_stamps(self):
        if not self.timing: return
        A = self.A
        A("s_memrealtime s[100:101]", "s_waitcnt lgkmcnt(0)")
        A(f"s_lshl_b32 s{S_T0}, s2, 2", f"s_add_u32 s{S_T0}, s{S_T0}, s{S_WAVE}", f"s_lshl_b32 s{S_T0}, s{S_T0}, 6", f"s_add_u32 s{S_T0}, s{S_T0}, {STAMPS:#x}")
        A(f"v_mov_b32 v20, s{S_T0}")
        for i in range(8): A(f"v_mov_b32 v{4+i}, s{S_TS+i}")
        A(f"v_mov_b32 v12, s3", "v_mov_b32 v13, s100", "v_mov_b32 v14, 0", "v_mov_b32 v15, 0")
        A(f"v_cmp_eq_u32 vcc, 0, v{V_LANE}", "s_and_saveexec_b64 s[100:101], vcc")
        for i in range(3): A(f"global_store_dwordx4 v20, v[{4+4*i}:{7+4*i}], s[{S_WS}:{S_WS+1}] offset:{16*i}")
        A("s_waitcnt vmcnt(0)", "s_mov_b64 exec, s[100:101]")

    def prologue(self):
        A = self.A
        A("s_cmp_ge_u32 s2, 256", "s_cbranch_scc1 L_end")
        if self.timing:
            A("s_memrealtime s[100:101]", "s_waitcnt lgkmcnt(0)", "s_mov_b32 s3, s100")
            self.stamp(0)
        A(f"s_load_dwordx8 s[{KA0}:{KA0+7}], s[0:1], 0", f"s_load_dwordx8 s[{KA1}:{KA1+7}], s[0:1], 32")
        A("v_lshrrev_b32 v1, 6, v0", f"v_and_b32 v{V_LANE}, 63, v0")
        A(f"v_readfirstlane_b32 s{S_WAVE}, v1")
        A("s_nop 3")
        if "nocodepf" not in self.dbg:
            A(f"v_and_b32 v20, 15, v{V_LANE}", f"s_lshr_b32 s{S_T0}, s2, 3", f"s_lshl_b32 s{S_T0}, s{S_T0}, 4")
            A(f"s_cmp_lg_u32 s{S_WAVE}, 3", "s_cbranch_scc1 L_nopf")
            A("s_getpc_b64 s[100:101]")
            A.label("L_pc0")
            A(f"s_sub_u32 s100, s100, L_pc0-{NAME}", "s_subb_u32 s101, s101, 0")
            A(f"v_add_u32 v20, s{S_T0}, v20", "v_lshlrev_b32 v20, 7, v20")
            A(f"v_min_u32 v20, L_end-{NAME}, v20", "global_load_dword v21, v20, s[100:101]")
            A.label("L_nopf")
        A(f"s_and_b32 s{S_J}, s2, 7", f"s_lshr_b32 s{S_C}, s2, 3", f"s_and_b32 s{S_C}, s{S_C}, 3", f"s_lshr_b32 s{S_B}, s2, 5")
        A(f"s_lshl_b32 s{S_H}, s{S_J}, 2", f"s_add_u32 s{S_H}, s{S_H}, s{S_C}")
        A(f"s_lshl_b32 s{S_ROT}, s{S_C}, 1", f"s_add_u32 s{S_ROT}, s{S_ROT}, s{S_B}", f"s_and_b32 s{S_ROT}, s{S_ROT}, 7")
        L = V_LANE
        A(f"v_lshrrev_b32 v2, 4, v{L}", f"v_and_b32 v3, 15, v{L}", f"v_and_b32 v4, 31, v{L}", f"v_lshrrev_b32 v5, 5, v{L}")
        A("v_lshrrev_b32 v6, 2, v3", "v_and_b32 v7, 3, v3")
        A("v_lshlrev_b32 v8, 2, v2", "v_xor_b32 v8, v8, v3", "v_lshlrev_b32 v8, 4, v8")
        A(f"v_lshl_add_u32 v{RAWW}, v2, 13, v8")
        for j in range(1, 4): A(f"v_add_u32 v{RAWW+j}, {j*31744}, v{RAWW}")
        A(f"v_and_b32 v9, 7, v{L}", "v_xor_b32 v9, v9, v2", "v_lshlrev_b32 v9, 4, v9", f"v_lshrrev_b32 v10, 3, v{L}")
        A(f"v_lshl_add_u32 v{RAWX}, v10, 10, v9")
        A(f"v_xor_b32 v{RAWX+1}, 64, v{RAWX}", f"v_add_u32 v{RAWX+1}, 7168, v{RAWX+1}")
        A(f"v_add_u32 v{RAWX+2}, 14336, v{RAWX}")
        A(f"v_add_u32 v{RAWX+3}, 14336, v{RAWX+1}")
        self.q_slots_pre()
        A(f"s_mov_b32 s{SLOT_SRD[0]+3}, 0x20000")
        A("s_waitcnt lgkmcnt(0)")
        self.pstamp(1)
        x, k, v, wq, wo = KA0, KA0+2, KA0+4, KA0+6, KA1
        A(f"s_mul_i32 s{S_T0}, s{S_B}, 229376")
        A(f"s_add_u32 s{SRD_X}, s{x}, s{S_T0}", f"s_addc_u32 s{SRD_X+1}, s{x+1}, 0", f"s_mov_b32 s{SRD_X+2}, 229376", f"s_mov_b32 s{SRD_X+3}, 0x20000")
        A(f"s_lshl_b32 s{S_T0}, s{S_H}, 8")
        A(f"s_add_u32 s{SRD_WQ}, s{wq}, s{S_T0}", f"s_addc_u32 s{SRD_WQ+1}, s{wq+1}, 0", f"s_sub_u32 s{SRD_WQ+2}, 0x400000, s{S_T0}", f"s_mov_b32 s{SRD_WQ+3}, 0x20000")
        A(f"s_cmp_eq_u32 s{S_WAVE}, 3", "s_cbranch_scc1 L_LW")

    def srds_rest(self):
        A = self.A
        x, k, v, wq, wo = KA0, KA0+2, KA0+4, KA0+6, KA1
        A(f"s_lshl_b32 s{S_T0}, s{S_B}, 5", f"s_add_u32 s{S_T0}, s{S_T0}, s{S_H}", f"s_lshl_b32 s{S_T0}, s{S_T0}, 18")
        A(f"s_add_u32 s{SRD_K}, s{k}, s{S_T0}", f"s_addc_u32 s{SRD_K+1}, s{k+1}, 0", f"s_mov_b32 s{SRD_K+2}, 0x40000", f"s_mov_b32 s{SRD_K+3}, 0x20000")
        A(f"s_add_u32 s{SRD_V}, s{v}, s{S_T0}", f"s_addc_u32 s{SRD_V+1}, s{v+1}, 0", f"s_mov_b32 s{SRD_V+2}, 0x40000", f"s_mov_b32 s{SRD_V+3}, 0x20000")
        A(f"s_lshl_b32 s{S_T0}, s{S_J}, 19", f"s_lshl_b32 s{S_T1}, s{S_C}, 8", f"s_add_u32 s{S_T0}, s{S_T0}, s{S_T1}")
        A(f"s_add_u32 s{SRD_WO}, s{wo}, s{S_T0}", f"s_addc_u32 s{SRD_WO+1}, s{wo+1}, 0", f"s_sub_u32 s{SRD_WO+2}, 0x400000, s{S_T0}", f"s_mov_b32 s{SRD_WO+3}, 0x20000")
        A(f"s_mov_b64 s[{S_OUT}:{S_OUT+1}], s[{KA1+2}:{KA1+3}]", f"s_mov_b64 s[{S_DBG}:{S_DBG+1}], s[{KA1+4}:{KA1+5}]", f"s_mov_b64 s[{S_WS}:{S_WS+1}], s[{KA1+6}:{KA1+7}]")

    def addr_regs(self):
        A = self.A
        A(f"v_lshl_add_u32 v{VOFFV}, v2, 8, v8")
        A("v_xor_b32 v9, v3, v2", "v_lshlrev_b32 v9, 4, v9", f"v_lshl_add_u32 v{VOFFK}, v2, 8, v9")
        for j in range(1, 4): A(f"v_xor_b32 v{VOFFK+j}, {j<<6}, v{VOFFK}")
        A(f"v_lshl_add_u32 v{VOFFO}, v2, 10, v8")
        for j in range(1, 4): A(f"v_add_u32 v{VOFFO+j}, {j*3072}, v{VOFFO}")
        A("v_and_b32 v9, 15, v4", "v_xor_b32 v9, v9, v5", "v_lshlrev_b32 v9, 4, v9", "v_lshl_add_u32 v9, v4, 8, v9", f"v_add_u32 v{KADDR}, {RBASE}, v9")
        for c in range(1, 8): A(f"v_xor_b32 v{KADDR+c}, {c<<5}, v{KADDR}")
        A("v_and_b32 v10, 1, v2", "v_lshlrev_b32 v10, 1, v10", "v_lshlrev_b32 v11, 2, v6", "v_or_b32 v10, v10, v11")
        A("v_lshrrev_b32 v11, 1, v7", "v_or_b32 v11, v11, v10", "v_lshlrev_b32 v11, 4, v11")
        A("v_and_b32 v12, 1, v7", "v_lshl_add_u32 v11, v12, 3, v11")
        A("v_lshl_add_u32 v12, v5, 2, v6", "v_lshl_add_u32 v11, v12, 8, v11", f"v_add_u32 v{VADDR}, {RBASE}, v11")
        for d in range(1, 4): A(f"v_xor_b32 v{VADDR+d}, {d<<6}, v{VADDR}")
        A("v_and_b32 v11, 1, v7", "v_or_b32 v11, v11, v10", "v_lshlrev_b32 v11, 4, v11")
        A("v_lshrrev_b32 v12, 1, v7", "v_lshl_add_u32 v11, v12, 3, v11")
        A("v_lshl_add_u32 v12, v5, 3, v6", "v_lshl_add_u32 v11, v12, 8, v11", f"v_add_u32 v{WADDR}, {WOFF}, v11")
        for d in range(1, 4): A(f"v_xor_b32 v{WADDR+d}, {d<<6}, v{WADDR}")
        A("v_lshrrev_b32 v11, 1, v4", "v_and_b32 v11, 7, v11", "v_xor_b32 v11, v11, v5", "v_lshlrev_b32 v11, 4, v11", "v_lshl_add_u32 v11, v4, 7, v11")
        A(f"s_lshl_b32 s{S_T0}, s{S_WAVE}, 13", f"s_add_u32 s{S_T0}, s{S_T0}, {XOFF}", f"v_add_u32 v{XADDR}, s{S_T0}, v11")
        for ks in range(1, 4): A(f"v_xor_b32 v{XADDR+ks}, {ks<<5}, v{XADDR}")
        for r in range(4):
            A(f"v_add_u32 v{XADDR2+r}, {2*QBUF}, v{XADDR+r}", f"v_add_u32 v{WADDR2+r}, {2*QBUF}, v{WADDR+r}")
        for r in range(4): A(f"v_mov_b32 v{V_ZERO+r}, 0")
        A(f"v_mov_b32 v{V_LA}, 0", f"v_mov_b32 v{V_LB}, 0")

    def q_slots_pre(self):
        A = self.A
        XB, XL, WB, WL, EB, ES, EL = 76, 77, 78, 79, 80, 81, 82
        A(f"s_lshl_b32 s{XB}, s{S_WAVE}, 16", f"s_lshl_b32 s{XL}, s{S_WAVE}, 13", f"s_lshl_b32 s{WB}, s{S_WAVE}, 17")
        A(f"s_lshl_b32 s{WL}, s{S_WAVE}, 12", f"s_add_u32 s{WL}, s{WL}, {WOFF}")
        A(f"s_cmp_eq_u32 s{S_WAVE}, 0")
        A(f"s_cselect_b32 s{ES}, 7, 19")
        A(f"s_cselect_b64 s[{S_T2}:{S_T3}], -1, 0")
        A(f"s_cselect_b32 s{EB}, 6, 12", f"s_cselect_b32 s{EL}, 0, {WOFF + 3*4096 - 6*4096}")
        A(f"s_lshl_b32 s{EB}, s{EB}, 15", f"s_add_u32 s{EL}, s{EL}, {6*4096}")
        for j in range(4): A(f"v_cndmask_b32 v{SLOTV+j}, v{RAWW+j}, v{RAWX+j}, s[{S_T2}:{S_T3}]")

    def q_slots_post(self):
        A = self.A
        A(f"s_cmp_eq_u32 s{S_WAVE}, 0")
        for w in range(3): A(f"s_cselect_b32 s{SLOT_SRD[0]+w}, s{SRD_X+w}, s{SRD_WQ+w}")

    def q_dma(self, buf, step):
        XB, XL, WB, WL, EB, ES, EL = 76, 77, 78, 79, 80, 81, 82
        nt = " nt" if "qnt" in self.dbg else ""
        def loads(v, srd): return [f"buffer_load_dwordx4 v{v+j}, s[{srd}:{srd+3}], s{S_T0} offen offset:{j*1024}{nt} lds" for j in range(4)]
        out = []
        out.append([f"s_lshl_b32 s{S_T1}, s{S_KC}, 7", f"s_add_u32 m0, s{XL}, {buf*QBUF}", f"s_add_u32 s{S_T0}, s{XB}, s{S_T1}"] + loads(RAWX, SRD_X))
        out.append([f"s_add_u32 m0, s{XL}, {buf*QBUF + 4096}", f"s_add_u32 s{S_T0}, s{S_T0}, 32768"] + loads(RAWX, SRD_X))
        out.append([f"s_lshl_b32 s{S_T1}, s{S_KC}, 19", f"s_add_u32 m0, s{WL}, {buf*QBUF}", f"s_add_u32 s{S_T0}, s{WB}, s{S_T1}"] + loads(RAWW, SRD_WQ))
        lb = self.lab("qskip")
        out.append([f"s_cmp_eq_u32 s{S_WAVE}, 2", f"s_cbranch_scc1 {lb}", f"s_lshl_b32 s{S_T1}, s{S_KC}, s{ES}", f"s_add_u32 m0, s{EL}, {buf*QBUF}", f"s_add_u32 s{S_T0}, s{EB}, s{S_T1}"]
                   + loads(SLOTV, SLOT_SRD[0]) + [lb + ":"])
        out.append([f"s_add_u32 s{S_KC}, s{S_KC}, {step}", f"s_and_b32 s{S_KC}, s{S_KC}, 7"])
        return out

    def q_reads(self, st, buf, nblk):
        rd = []
        xa, wa, bo = (XADDR, WADDR, buf * QBUF) if buf < 2 else (XADDR2, WADDR2, 0)
        for ks in range(4):
            for blk in range(nblk):
                rd.append(f"ds_read_b128 {ar(XF(st,blk,ks),4)}, v{xa+ks} offset:{bo + blk*4096}")
            for db in range(4):
                for jh in range(2):
                    rd.append(f"ds_read_b64_tr_b16 {ar(WF(st,ks,db)+2*jh,2)}, v{wa+db} offset:{bo + ks*4096 + jh*1024}")
        return rd

    KVSEQ = [("K",0),("V",0),("K",1),("V",1),("K",2),("V",2),("K",3)]

    KVQ = {4: [("K",0)], 5: [("V",0), ("K",1)], 6: [("V",1), ("K",2)]}

    KVQ = {4: [("K",0)], 5: [("V",0), ("K",1)], 6: [("V",1), ("K",2)]}
    QSTEP = [2, 2, 2, 3, 2, 2, 2, 2]

    def spread_dma(self, groups, gaps, lo, hi):
        nload = sum(1 for g in groups for x in g if x.startswith("buffer_load"))
        pos = 0
        def at(): return min(hi, lo + pos * (hi - lo + 1) // max(1, nload))
        for g in groups:
            if any(x.startswith("s_cbranch") for x in g):
                gaps[at()] += g; pos += 4; continue
            pend = []
            for x in g:
                pend.append(x)
                if x.startswith("buffer_load"):
                    gaps[at()] += pend; pend = []; pos += 1
            if pend: gaps[at()] += pend

    def q_iter(self, i, nblk, lw):
        st = i & 1
        mf = []
        for ks in range(4):
            for db in range(4):
                for blk in range(nblk):
                    a = ACC(blk, db)
                    c = "0" if (i == 0 and ks == 0) else vr(a, 16)
                    mf.append(f"{MFMA} {vr(a,16)}, {ar(WF(st,ks,db),4)}, {ar(XF(st,blk,ks),4)}, {c}")
        n = len(mf)
        gaps = [[] for _ in range(n)]
        if not lw: gaps[0].append("s_waitcnt vmcnt(12)" if 1 <= i <= 5 else "s_waitcnt vmcnt(0)")
        gaps[0].append("s_barrier")
        rds = self.q_reads(st ^ 1, (i + 1) % 3, nblk)
        span = n - 4 if not lw else n - 2
        for idx, r in enumerate(rds): gaps[1 + idx * span // len(rds)].append(r)
        if not lw:
            if i == 0:
                self.spread_dma(self.q_dma(2, self.QSTEP[2]), gaps, 1, 15)
                self.spread_dma(self.q_dma(0, self.QSTEP[3]), gaps, 16, 30)
            elif i + 3 <= 7:
                self.spread_dma(self.q_dma(i % 3, self.QSTEP[i + 3]), gaps, 1, 29)
        else:
            dm = []
            for kind, t in self.KVQ.get(i, []): dm += self.tile_dma(kind, t % 4, f"{t*8192}")
            if dm:
                per = -(-len(dm) // (n - 2))
                for idx, x in enumerate(dm): gaps[1 + idx // per].append(x)
        self.A("s_waitcnt lgkmcnt(0)")
        self.weave(mf, gaps)

    def q_last(self, nblk, lw):
        A = self.A
        st = 1
        tiles = [(blk, db) for blk in range(nblk) for db in range(4)]
        mf = []
        for blk, db in tiles:
            a = ACC(blk, db)
            for ks in range(4):
                mf.append(f"{MFMA} {vr(a,16)}, {ar(WF(st,ks,db),4)}, {ar(XF(st,blk,ks),4)}, {vr(a,16)}")
        nt = len(tiles)
        conv = []
        for blk, db in tiles:
            a = ACC(blk, db); c = []
            for r in range(a, a + 16): c.append(f"v_mul_f32 v{r}, s{S_T2}, v{r}")
            for u in range(2):
                for pj in range(4):
                    r = a + 8*u + 2*pj
                    c.append(f"v_cvt_pk_bf16_f32 v{r}, v{r}, v{r+1}")
            for u in range(2):
                for pj in range(4):
                    r = a + 8*u + 2*pj
                    c.append(f"v_accvgpr_write_b32 a{QF(blk, 2*db+u)+pj}, v{r}")
            conv.append(c)
        zero = [f"{MFMA} {vr(ACC(blk,db),16)}, {vr(V_ZERO,4)}, {vr(V_ZERO,4)}, 0" for blk, db in tiles]
        A(f"s_mov_b32 s{S_T2}, {f2u(QSCALE):#x}", "s_waitcnt lgkmcnt(0)")
        stream = []
        late = []
        for ti in range(nt):
            for ins in conv[ti]:
                ms = 4 * ti + 3 + 3
                if "accvgpr_write" in ins and tiles[ti][0] == 1: late.append((4 * nt, ins, ti))
                else: stream.append((ms, ins, ti))
        stream += late
        slots = mf + zero
        gaps = [[] for _ in slots]
        pos = 0
        done_tile = [0] * nt
        remaining = [len(c) for c in conv]
        out_m = []; out_g = []
        si = 0
        for s in range(len(mf)):
            g = []
            while si < len(stream) and stream[si][0] <= s and len(g) < 5:
                g.append(stream[si][1]); remaining[stream[si][2]] -= 1; si += 1
            out_m.append(mf[s]); out_g.append(g)
        kb = len(mf) - 3
        if lw:
            dm = self.tile_dma("V", 2, f"{2*8192}") + self.tile_dma("K", 3, f"{3*8192}")
            for idx, x in enumerate(dm): out_g[idx * kb // len(dm)].insert(sum(1 for j in range(idx) if j * kb // len(dm) == idx * kb // len(dm)), x)
        bar = (["s_waitcnt vmcnt(48)" if "kv0" not in self.dbg else "s_waitcnt vmcnt(0)"] if lw else []) + ["s_barrier"]
        self.weave(out_m[:kb], out_g[:kb])
        A(out_m[kb]);
        for x in bar: A(x)
        for c in range(8): A(f"ds_read_b128 {ar(KF(c),4)}, v{KADDR+c} offset:{KSLOT[0]-RBASE}")
        for x in out_g[kb]: A(x)
        self.weave(out_m[kb+1:], out_g[kb+1:])
        zi = 0
        while si < len(stream) or zi < nt:
            if zi < nt and remaining[zi] == 0:
                A(zero[zi]); zi += 1
                continue
            cnt = 0
            while si < len(stream) and cnt < 6:
                A(stream[si][1]); remaining[stream[si][2]] -= 1; si += 1; cnt += 1
                if zi < nt and remaining[zi] == 0: break

    def dump_frags(self, nblk, fn):
        A = self.A
        A(f"s_lshl_b32 s{S_T0}, s2, 16", f"s_lshl_b32 s{S_T1}, s{S_WAVE}, 14", f"s_add_u32 s{S_T0}, s{S_T0}, s{S_T1}", f"s_add_u32 s{S_T0}, s{S_T0}, {OFRAG:#x}")
        A(f"v_lshlrev_b32 v{V_T[2]}, 4, v{V_LANE}", f"v_add_u32 v{V_T[2]}, s{S_T0}, v{V_T[2]}")
        for blk in range(nblk):
            for c in range(8):
                A(f"v_add_u32 v{V_T[3]}, {(blk*8+c)*1024}, v{V_T[2]}")
                A(f"global_store_dwordx4 v{V_T[3]}, {fn(blk,c)}, s[{S_WS}:{S_WS+1}]")
        A("s_waitcnt vmcnt(0)")

    def tile_dma(self, kind, slot, soff, nt=True):
        out = []
        if "nont" in self.dbg: nt = False
        base = (KSLOT if kind == "K" else VSLOT)[slot]
        srd = SRD_K if kind == "K" else SRD_V
        for g in range(2):
            out.append(f"s_add_u32 s{S_T1}, {soff}, {g*4096}" if not soff.isdigit() else f"s_mov_b32 s{S_T1}, {int(soff)+g*4096}")
            out.append(f"s_mov_b32 m0, {base + g*4096}")
            for j in range(4):
                vo = VOFFK + j if kind == "K" else VOFFV
                out.append(f"buffer_load_dwordx4 v{vo}, s[{srd}:{srd+3}], s{S_T1} offen offset:{j*1024}{' nt' if nt else ''} lds")
        res = []
        i = 0
        while i < len(out):
            res += [out[i+1], out[i]] + out[i+2:i+6]; i += 6
        return res

    def sm_items(self, blk, exp_gaps, lo=0, hi=16, extra_add=(), extra_cvt=(), skip=(15,)):
        S = SA if blk == 0 else SB; P = PA if blk == 0 else PB; Lr = V_LA if blk == 0 else V_LB
        out = {}
        def put(g, prio, ins):
            while g in skip: g += 1
            out.setdefault(g, []).append((prio, ins))
        for e in extra_add: put(0, 1, f"v_add_f32 v{Lr}, v{S+e}, v{Lr}")
        for p in extra_cvt: put(0, 2, f"v_cvt_pk_bf16_f32 v{P+p}, v{S+2*p}, v{S+2*p+1}")
        for i in range(lo, hi):
            g = exp_gaps[i - lo]
            put(g, 0, f"v_exp_f32 v{S+i}, v{S+i}")
            put(g + 1, 1, f"v_add_f32 v{Lr}, v{S+i}, v{Lr}")
            if i & 1:
                put(g + 1, 2, f"v_cvt_pk_bf16_f32 v{P+i//2}, v{S+i-1}, v{S+i}")
        return out

    def attn_iter(self, t, lw):
        A = self.A
        tm = t % 4
        do_qk = t + 1 <= 31; do_pv = t >= 0
        do_kr = t + 2 <= 31; do_vr = 0 <= t + 1 <= 31
        def qk(blk):
            S = SA if blk == 0 else SB
            return [f"{MFMA} {vr(S,16)}, {ar(KF(c),4)}, {ar(QF(blk,c),4)}, {'0' if c == 0 else vr(S,16)}" for c in range(8)] if do_qk else [None]*8
        def pv(blk):
            P = PA if blk == 0 else PB
            return [f"{MFMA} {vr(ACC(blk,db),16)}, {ar(VF(db,ks),4)}, {vr(P+4*ks,4)}, {vr(ACC(blk,db),16)}" for ks in range(2) for db in range(4)] if do_pv else [None]*8
        mf = qk(0) + pv(0) + (qk(1) + pv(1) if not lw else [None]*16)
        gaps = [[] for _ in range(33)]
        def merge(d):
            for g, lst in d.items():
                if g < 32: gaps[g] += lst
        BEXP = [28,29,30,31] + list(range(0,12))
        AEXP = [12,13,13,14] + list(range(16,28))
        if not lw:
            if t >= 0: merge(self.sm_items(1, BEXP[4:], lo=4, hi=16, extra_add=(3,), extra_cvt=(1,)))
            if do_qk:
                merge(self.sm_items(0, AEXP))
                merge(self.sm_items(1, BEXP[:4], lo=0, hi=4))
        else:
            if do_qk: merge(self.sm_items(0, AEXP))
        gl = [[ins for _, ins in sorted(g, key=lambda x: x[0])] for g in gaps]
        mem = [[] for _ in range(33)]
        kslot = (t + 2) % 4; vslot = (t + 1) % 4
        kr = [f"ds_read_b128 {ar(KF(c),4)}, v{KADDR+c} offset:{KSLOT[kslot]-RBASE}" for c in range(8)] if do_kr else []
        vrd = []
        if do_vr:
            for ks in range(2):
                for db in range(4):
                    for jh in range(2):
                        vrd.append(f"ds_read_b64_tr_b16 {ar(VF(db,ks)+2*jh,2)}, v{VADDR+db} offset:{VSLOT[vslot]-RBASE + ks*4096 + jh*2048}")
        if not lw:
            for c, r in enumerate(kr): mem[16 + c].append(r)
            for i, r in enumerate(vrd): mem[24 + i // 2].append(r)
        else:
            for c, r in enumerate(kr): mem[16 + c // 2].append(r)
            for i, r in enumerate(vrd): mem[20 + i // 4].append(r)
        bar = []
        if lw:
            w = ({29: 24, 30: 24} if self.stage >= 3 else {28: 24, 29: 8, 30: 0}).get(t, 32)
            if "kv0" in self.dbg: w = 0
            if t <= 30: bar.append(f"s_waitcnt vmcnt({w})")
        bar.append("s_barrier")
        if "dly" in self.dbg: bar += ["s_nop 15"] * 6
        if "kv16" in self.dbg and lw: bar = [x.replace("vmcnt(32)", "vmcnt(16)").replace("vmcnt(24)", "vmcnt(8)") for x in bar]
        mem[15] = bar
        if lw and t >= 0:
            dm = []
            if t <= 27:
                dm += self.tile_dma("K", tm, f"s{S_KOFF}") + self.tile_dma("V", (t + 3) % 4, f"s{S_VOFF}")
                dm += [f"s_add_u32 s{S_KOFF}, s{S_KOFF}, 8192", f"s_add_u32 s{S_VOFF}, s{S_VOFF}, 8192"]
            elif t == 28:
                dm += self.tile_dma("V", (t + 3) % 4, f"s{S_VOFF}")
                if self.stage >= 3: dm += self.wo_tile_dma(3, 0)
            elif self.stage >= 3:
                dm += self.wo_tile_dma(3, t - 28)
            if dm:
                per = -(-len(dm) // 14)
                for i, x in enumerate(dm): mem[i // per].append(x)
        if (not lw) and self.stage >= 3 and (t == -1 or (tm == 0 and 0 <= t <= 24)):
            dm = self.wo_group_dma()
            for i, x in enumerate(dm): mem[1 + i // 3].append(x)
        if t == 31 and self.stage >= 3 and lw:
            A(f"v_mov_b32 v{V_EP+6}, 0", f"global_load_dwordx2 v[{V_EP}:{V_EP+1}], v{V_EP+6}, s[{S_DBG}:{S_DBG+1}] sc1")
        if do_qk: A("s_waitcnt lgkmcnt(15)" if t >= 0 else "s_waitcnt lgkmcnt(0)")
        for g in range(32):
            if g == 8 and do_pv: A("s_waitcnt lgkmcnt(0)")
            if mf[g]: A(mf[g])
            for x in mem[g]: A(x)
            for x in gl[g]: A(x)

    def wo_tile_dma(self, o, tile):
        out = []
        for g in range(2):
            out.append(f"s_mov_b32 m0, {KSLOT[tile] + g*4096}")
            out.append(f"s_add_u32 s{S_T1}, s{S_WOOFF}, {tile*32768 + g*16384}")
            for j in range(4):
                out.append(f"buffer_load_dwordx4 v{VOFFO+j}, s[{SRD_WO}:{SRD_WO+3}], s{S_T1} offen offset:{j*1024}{' nt' if 'wont' in self.dbg else ''} lds")
        return out

    def wo_group_dma(self):
        out = [f"s_mov_b32 m0, s{S_WOLDS}", f"s_add_u32 s{S_WOLDS}, s{S_WOLDS}, 4096"]
        for j in range(4):
            out.append(f"buffer_load_dwordx4 v{VOFFO+j}, s[{SRD_WO}:{SRD_WO+3}], s{S_WOOFF} offen offset:{j*1024}{' nt' if 'wont' in self.dbg else ''} lds")
        out.append(f"s_add_u32 s{S_WOOFF}, s{S_WOOFF}, 16384")
        return out

    def attention(self, lw):
        A = self.A
        tag = "LW" if lw else "CW"
        if self.stage >= 3: self.tail_setup()
        self.attn_iter(-1, lw)
        self.stamp(4)
        A(f"s_mov_b32 s{S_CNT}, 0")
        A(".p2align 4")
        A.label(f"L_attn_{tag}")
        start = len(A.L)
        for t in range(4): self.attn_iter(t, lw)
        body = A.L[start:]
        check_hazards(body + body, fix=False, name="attn loop " + tag)
        A(f"s_add_u32 s{S_CNT}, s{S_CNT}, 1", f"s_cmp_lt_u32 s{S_CNT}, 7", f"s_cbranch_scc1 L_attn_{tag}")
        for t in range(28, 32): self.attn_iter(t, lw)

    def l_combine(self, nblk):
        A = self.A
        R = [252, 254]
        for blk in range(nblk):
            Lr = V_LA if blk == 0 else V_LB
            A(f"v_mov_b32 v{R[blk]}, v{Lr}")
        A("s_nop 1")
        for blk in range(nblk):
            Lr = V_LA if blk == 0 else V_LB
            A(f"v_permlane32_swap_b32 v{Lr}, v{R[blk]}")
        for blk in range(nblk):
            Lr = V_LA if blk == 0 else V_LB
            A(f"v_add_f32 v{Lr}, v{Lr}, v{R[blk]}")
        for blk in range(nblk):
            Lr = V_LA if blk == 0 else V_LB
            A(f"v_rcp_f32 v{R[blk]}, v{Lr}")
        A("s_nop 0")

    def norm_block(self, blk):
        R = [252, 254][blk]
        out = []
        for db in range(4):
            a = ACC(blk, db)
            for r in range(a, a + 16, 2): out.append(f"v_pk_mul_f32 v[{r}:{r+1}], v[{r}:{r+1}], v[{R}:{R+1}] op_sel_hi:[1,0]")
            for u in range(2):
                for pj in range(4):
                    r = a + 8*u + 2*pj
                    out.append(f"v_cvt_pk_bf16_f32 v{OFR(blk, 2*db+u)+pj}, v{r}, v{r+1}")
        return out

    def normalize(self, nblk):
        self.l_combine(nblk)
        for blk in range(nblk):
            for x in self.norm_block(blk): self.A(x)

    def poll(self, nflags, vaddr_reg):
        A = self.A
        lp = self.lab("poll"); done = self.lab("polld")
        D = [214, 216, 218, 220]
        ld = lambda k: f"buffer_load_dwordx2 v[{D[k]}:{D[k]+1}], v{vaddr_reg}, s[{SRD_WS}:{SRD_WS+3}], 0 offen sc1"
        A(f"s_mov_b64 s[{S_T2}:{S_T3}], exec", f"s_mov_b64 exec, {(1 << nflags) - 1}")
        A(f"s_mov_b32 s{S_CNT}, 0")
        for k in range(3): A(ld(k), "s_nop 15", "s_nop 15")
        A.label(lp)
        for k in range(4):
            A(ld((k + 3) & 3))
            A("s_waitcnt vmcnt(3)")
            A(f"v_cmp_ne_u64 vcc, s[{S_EP}:{S_EP+1}], v[{D[k]}:{D[k]+1}]")
            A("s_nop 4")
            A(f"s_cbranch_vccz {done}")
        A(f"s_add_u32 s{S_CNT}, s{S_CNT}, 1", f"s_cmp_gt_u32 s{S_CNT}, 0x10000", f"s_cbranch_scc0 {lp}")
        A.label(done)
        A(f"s_mov_b64 exec, s[{S_T2}:{S_T3}]")

    def wo_reads(self, o, kk, par):
        reg = [W_LO, W_LO, W_MID, VADDR][o]
        t = kk >> 1
        imm = [t * 8192, 32768 + t * 8192, t * 8192, KSLOT[t] - RBASE][o] + (kk & 1) * 4096
        return [f"ds_read_b64_tr_b16 {ar(WOF(par, nb) + 2*jh, 2)}, v{reg+nb} offset:{imm + jh*2048}" for nb in range(4) for jh in range(2)]

    def oproj_steps(self, steps, pre=None, fill=None, first_c0=()):
        A = self.A
        pre = pre or {}; fill = fill or {}
        for si, (o, kk, blks) in enumerate(steps):
            par = (self.opar + si) & 3
            mf = []
            for nb in range(4):
                for blk in blks:
                    a = ACC(blk, nb)
                    b = vr(OFR(blk, kk), 4) if o == 0 else ar(PFR(o, blk, kk), 4)
                    c = "0" if (si, blk) in first_c0 else vr(a, 16)
                    mf.append(f"{MFMA} {vr(a,16)}, {ar(WOF(par, nb),4)}, {b}, {c}")
            nxt = []
            if si + 2 < len(steps): nxt = self.wo_reads(steps[si+2][0], steps[si+2][1], (par + 2) & 3)
            elif self.onext and si + 2 - len(steps) < len(self.onext):
                o2, k2 = self.onext[si + 2 - len(steps)]; nxt = self.wo_reads(o2, k2, (par + 2) & 3)
            gaps = [[] for _ in mf]
            for i, r in enumerate(nxt): gaps[i * len(mf) // 8].append(r)
            f = fill.get(si, [])
            for i, x in enumerate(f): gaps[min(len(mf) - 1, i * len(mf) // max(1, len(f)))].append(x)
            for x in pre.get(si, []): A(x)
            has_next = (si + 1 < len(steps)) or bool(self.onext)
            A("s_waitcnt lgkmcnt(8)" if has_next else "s_waitcnt lgkmcnt(0)")
            self.weave(mf, gaps)
        self.opar = (self.opar + len(steps)) & 3

    def flag_store(self, base):
        A = self.A
        A(f"s_lshl_b32 s{S_T0}, s2, 7", f"s_add_u32 s{S_T0}, s{S_T0}, {base}", f"v_mov_b32 v{V_EP+6}, s{S_T0}")
        A(f"s_mov_b64 s[{S_T2}:{S_T3}], exec", "s_mov_b64 exec, 1")
        A(f"buffer_store_dwordx2 v[{V_EP}:{V_EP+1}], v{V_EP+6}, s[{SRD_WS}:{SRD_WS+3}], 0 offen sc1")
        A(f"s_mov_b64 exec, s[{S_T2}:{S_T3}]")

    def stores(self, base_sgpr, blk, first_reg):
        out = []
        for half in range(2):
            out.append(f"s_add_u32 s{S_T1}, s{base_sgpr}, {(blk*8 + half*4)*1024}")
            for q in range(4):
                out.append(f"buffer_store_dwordx4 {vr(first_reg + (half*4+q)*4, 4)}, v{VL16}, s[{SRD_WS}:{SRD_WS+3}], s{S_T1} offen offset:{q*1024} sc1")
        return out

    def tail_setup(self):
        A = self.A
        S_PUB = 76; S_PART = 77; PB = [78, 79, 80]
        A(f"s_mov_b32 s{SRD_WS}, s{S_WS}", f"s_mov_b32 s{SRD_WS+1}, s{S_WS+1}", f"s_mov_b32 s{SRD_WS+2}, 0x10000000", f"s_mov_b32 s{SRD_WS+3}, 0x20000")
        A(f"s_mov_b32 s{SRD_OUT}, s{S_OUT}", f"s_mov_b32 s{SRD_OUT+1}, s{S_OUT+1}", f"s_mov_b32 s{SRD_OUT+2}, {8*224*512*2}", f"s_mov_b32 s{SRD_OUT+3}, 0x20000")
        A(f"v_lshlrev_b32 v{VL16}, 4, v{V_LANE}", f"s_lshl_b32 s{S_T0}, s{S_WAVE}, 14", f"v_add_u32 v{VL16}, s{S_T0}, v{VL16}")
        for nb in range(4):
            A(f"v_subrev_u32 v{W_LO+nb}, {RBASE}, v{VADDR+nb}")
            A(f"v_add_u32 v{W_MID+nb}, 65536, v{W_LO+nb}")
        A(f"s_lshl_b32 s{S_PUB}, s2, 16", f"s_add_u32 s{S_PART}, s{S_PUB}, {PART:#x}", f"s_add_u32 s{S_PUB}, s{S_PUB}, {OFRAG:#x}")
        for o in range(1, 4):
            A(f"s_add_u32 s{S_T0}, s{S_C}, {o}", f"s_and_b32 s{S_T0}, s{S_T0}, 3", f"s_lshl_b32 s{S_T0}, s{S_T0}, 3", f"s_andn2_b32 s{S_T1}, s2, 24", f"s_or_b32 s{S_T0}, s{S_T0}, s{S_T1}")
            A(f"s_lshl_b32 s{S_T0}, s{S_T0}, 16", f"s_add_u32 s{PB[o-1]}, s{S_T0}, {OFRAG:#x}")

    def tail(self, lw):
        A = self.A
        nblk = 1 if lw else 2
        blks = list(range(nblk))
        S_PUB = 76; S_PART = 77; PB = [78, 79, 80]
        self.l_combine(nblk)
        self.tstamp("T0")
        self.rstamp(6)
        for blk in blks:
            for x in self.norm_block(blk): A(x)
            for x in self.stores(S_PUB, blk, OFR(blk, 0)): A(x)
        self.tstamp("st1")
        A(f"s_waitcnt vmcnt({8*nblk})", "s_barrier")
        for r in self.wo_reads(0, 0, 0) + self.wo_reads(0, 1, 1): A(r)
        self.tstamp("bar0")
        self.stamp(10)
        if lw:
            lp = self.lab("ep"); dn = self.lab("epd")
            A(f"s_mov_b32 s{S_CNT}, 0")
            A.label(lp)
            A(f"v_readfirstlane_b32 s{S_EP}, v{V_EP}", f"v_readfirstlane_b32 s{S_EP+1}, v{V_EP+1}")
            A("s_nop 3", f"s_or_b32 s{S_T0}, s{S_EP}, s{S_EP+1}", f"s_cbranch_scc1 {dn}")
            A(f"s_add_u32 s{S_CNT}, s{S_CNT}, 1", f"s_cmp_gt_u32 s{S_CNT}, 0x40000", f"s_cbranch_scc1 {dn}")
            A(f"global_load_dwordx2 v[{V_EP}:{V_EP+1}], v{V_EP+6}, s[{S_DBG}:{S_DBG+1}] sc1", "s_waitcnt vmcnt(0)", f"s_branch {lp}")
            A.label(dn)
        self.opar = 0
        self.onext = [(0, 4), (0, 5)]
        self.oproj_steps([(0, kk, blks) for kk in range(4)], first_c0={(0, b) for b in blks})
        A(f"s_waitcnt vmcnt({8*(nblk-1)})", "s_barrier")
        def warm(blk):
            out = []
            if "warm" not in self.dbg: return out
            for half in range(2):
                out.append(f"s_add_u32 s{S_T1}, s{S_PUB}, {(blk*8 + half*4)*1024}")
                for q in range(4):
                    out.append(f"buffer_load_dwordx4 {ar(PFR(3, blk, half*4+q),4)}, v{VL16}, s[{SRD_WS}:{SRD_WS+3}], s{S_T1} offen offset:{q*1024} sc1")
            return out
        if lw: self.flag_store(FLAG1)
        self.onext = [(1, 0), (1, 1)]
        self.oproj_steps([(0, kk, blks) for kk in range(4, 8)], fill={0: warm(0)})
        self.tstamp("own")
        if not lw: A("s_waitcnt vmcnt(8)" if "warm" in self.dbg else "s_waitcnt vmcnt(0)")
        A("s_barrier")
        if not lw:
            for x in warm(1): A(x)
        self.tstamp("ack1")
        self.rstamp(7)
        def pflags(base):
            A(f"v_add_u32 v{V_EP+6}, 1, v{V_LANE}", f"v_lshlrev_b32 v{V_EP+6}, 3, v{V_EP+6}", f"v_xor_b32 v{V_EP+6}, s2, v{V_EP+6}", f"v_lshlrev_b32 v{V_EP+6}, 7, v{V_EP+6}")
            if base: A(f"v_add_u32 v{V_EP+6}, {base}, v{V_EP+6}")
        if lw:
            self.flag_store(FLAG1B)
            pflags(FLAG1)
            self.poll(3, V_EP + 6)
        A("s_barrier")
        self.tstamp("poll1")
        self.stamp(11)
        def group(o, blk):
            out = []
            for half in range(2):
                out.append(f"s_add_u32 s{S_T1}, s{PB[o-1]}, {(blk*8 + half*4)*1024}")
                for q in range(4):
                    out.append(f"buffer_load_dwordx4 {ar(PFR(o, blk, half*4+q),4)}, v{VL16}, s[{SRD_WS}:{SRD_WS+3}], s{S_T1} offen offset:{q*1024} sc1")
            return out
        for o in range(1, 4):
            for x in group(o, 0): A(x)
        stepsA = [(o, kk, [0]) for o in range(1, 4) for kk in range(8)]
        if lw:
            pflags(FLAG1B)
            self.poll(3, V_EP + 6)
            A("s_barrier")
            self.onext = None
            self.oproj_steps(stepsA, pre={0: ["s_waitcnt vmcnt(0)"]})
        else:
            g1 = group(1, 1) + group(2, 1) + group(3, 1)
            fill = {8: g1[:10], 9: g1[10:20], 10: g1[20:]}
            pre = {0: ["s_waitcnt vmcnt(16)"], 8: ["s_barrier", "s_waitcnt vmcnt(8)"], 16: ["s_waitcnt vmcnt(24)"]}
            self.onext = [(1, 0), (1, 1)]
            self.oproj_steps(stepsA, pre=pre, fill=fill)
        self.tstamp("phA")
        def pack(blk):
            out = []
            for nb in range(4):
                a = ACC(blk, nb)
                for u in range(2):
                    d = 128 + (blk * 8 + nb * 2 + u) * 4
                    for pj in range(4): out.append(f"v_cvt_pk_bf16_f32 v{d+pj}, v{a+8*u+2*pj}, v{a+8*u+2*pj+1}")
            return out
        if nblk == 2:
            stepsB = [(o, kk, [1]) for o in range(1, 4) for kk in range(8)]
            pk = pack(0); st = self.stores(S_PART, 0, 128)
            fill = {}
            for i in range(4): fill[1 + i] = pk[8*i:8*i+8]
            fill[5] = st[:5]; fill[6] = st[5:]
            preB = {0: ["s_waitcnt vmcnt(16)"], 8: ["s_waitcnt vmcnt(16)"], 16: ["s_waitcnt vmcnt(8)"]}
            self.onext = None
            self.oproj_steps(stepsB, pre=preB, fill=fill)
            A("s_nop 7", "s_nop 7")
            for x in pack(1): A(x)
            for x in self.stores(S_PART, 1, 128 + 32): A(x)
        else:
            A("s_nop 7", "s_nop 7")
            for x in pack(0): A(x)
            for x in self.stores(S_PART, 0, 128): A(x)
        self.stamp(7)
        self.tstamp("phB")
        A(f"s_andn2_b32 s{S_T0}, s2, 7", f"s_lshl_b32 s{S_T0}, s{S_T0}, 16", f"s_lshl_b32 s{S_T1}, s{S_J}, 13", f"s_add_u32 s{S_T0}, s{S_T0}, s{S_T1}")
        A(f"s_lshl_b32 s{S_T1}, s{S_WAVE}, 11", f"s_add_u32 s{S_T0}, s{S_T0}, s{S_T1}", f"s_add_u32 s{S_PUB}, s{S_T0}, {PART:#x}")
        VO = W_LO; VL = W_LO + 1
        A(f"v_and_b32 v{VO}, 31, v{V_LANE}", f"v_lshlrev_b32 v{VO}, 10, v{VO}", f"v_lshrrev_b32 v{VL}, 5, v{V_LANE}", f"v_lshl_add_u32 v{VO}, v{VL}, 4, v{VO}")
        A(f"v_lshlrev_b32 v{VL}, 4, v{V_LANE}")
        A(f"s_mul_i32 s{S_PART}, s{S_B}, {224*1024}", f"s_lshl_b32 s{S_T1}, s{S_J}, 15", f"s_add_u32 s{S_PART}, s{S_PART}, s{S_T1}")
        A(f"s_lshl_b32 s{S_T1}, s{S_C}, 8", f"s_add_u32 s{S_PART}, s{S_PART}, s{S_T1}", f"s_lshl_b32 s{S_T1}, s{S_WAVE}, 6", f"s_add_u32 s{S_PART}, s{S_PART}, s{S_T1}")
        A("s_mov_b32 s78, 0x3f80", "s_mov_b32 s79, 0x3f800000")
        A("s_waitcnt vmcnt(0)", "s_barrier")
        self.tstamp("ack2")
        tag = "LW" if lw else "CW"
        if lw:
            self.flag_store(FLAG2)
        A(f"s_cmp_eq_u32 s{S_J}, 7", f"s_cbranch_scc1 L_fin_{tag}")
        if lw:
            A(f"s_andn2_b32 s{S_T0}, s2, 7", f"v_add_u32 v{V_EP+6}, s{S_T0}, v{V_LANE}", f"v_lshlrev_b32 v{V_EP+6}, 7, v{V_EP+6}", f"v_add_u32 v{V_EP+6}, {FLAG2}, v{V_EP+6}")
            self.poll(8, V_EP + 6)
        A("s_barrier")
        self.tstamp("poll2")
        for u in range(2):
            for sp in range(8):
                d = (u * 8 + sp) * 4
                A(f"s_add_u32 s{S_T1}, s{S_PUB}, {sp*65536 + u*1024}")
                A(f"buffer_load_dwordx4 {vr(d,4)}, v{VL}, s[{SRD_WS}:{SRD_WS+3}], s{S_T1} offen sc1")
        if "tst2" in self.dbg:
            A("s_waitcnt vmcnt(0)"); self.tstamp("ld2")
        for u in range(2):
            lo = 128 + u * 8; hi = lo + 4
            for sp in range(8):
                d = (u * 8 + sp) * 4
                if sp in (0, 4): A(f"s_waitcnt vmcnt({(2 - u) * 8 - sp - 4 + u})")
                for q in range(4):
                    if "nodot" in self.dbg:
                        if sp == 0: A(f"v_lshlrev_b32 v{lo+q}, 16, v{d+q}", f"v_and_b32 v{hi+q}, 0xffff0000, v{d+q}")
                        else: A(f"v_lshlrev_b32 v{160+q}, 16, v{d+q}", f"v_and_b32 v{164+q}, 0xffff0000, v{d+q}", f"v_add_f32 v{lo+q}, v{lo+q}, v{160+q}", f"v_add_f32 v{hi+q}, v{hi+q}, v{164+q}")
                    else:
                        A(f"v_dot2_f32_bf16 v{lo+q}, v{d+q}, s78, {'0' if sp == 0 else f'v{lo+q}'}", f"v_dot2_f32_bf16 v{hi+q}, v{d+q}, s79, {'0' if sp == 0 else f'v{hi+q}'}")
            r = 168 + u * 4
            for q in range(4): A(f"v_cvt_pk_bf16_f32 v{r+q}, v{lo+q}, v{hi+q}")
            A("s_nop 1")
            A(f"v_permlane32_swap_b32 v{r}, v{r+2}", f"v_permlane32_swap_b32 v{r+1}, v{r+3}")
            A(f"s_add_u32 s{S_T1}, s{S_PART}, {u*32}")
            A(f"buffer_store_dwordx4 {vr(r,4)}, v{VO}, s[{SRD_OUT}:{SRD_OUT+3}], s{S_T1} offen")
        A.label(f"L_fin_{tag}")
        if self.timing: A("s_waitcnt vmcnt(0)")

    def path(self, lw):
        A = self.A
        nblk = 1 if lw else 2
        self.lock = False
        if lw:
            A.label("L_LW")
            self.srds_rest()
            if self.stage >= 3:
                lb = self.lab("noep")
                A("s_cmp_lg_u32 s2, 0", f"s_cbranch_scc1 {lb}")
                A("s_memrealtime s[100:101]", "s_waitcnt lgkmcnt(0)", "s_or_b32 s100, s100, 1")
                A(f"v_mov_b32 v{V_EP}, s100", f"v_mov_b32 v{V_EP+1}, s101", f"v_mov_b32 v{V_EP+6}, 0")
                A(f"s_mov_b64 s[{S_T2}:{S_T3}], exec", "s_mov_b64 exec, 1")
                A(f"global_store_dwordx2 v{V_EP+6}, v[{V_EP}:{V_EP+1}], s[{S_DBG}:{S_DBG+1}] sc1")
                A(f"s_mov_b64 exec, s[{S_T2}:{S_T3}]")
                A.label(lb)
            self.addr_regs()
        else:
            self.q_slots_post()
            A(f"s_mov_b32 s{S_KC}, s{S_ROT}")
            self.pstamp(2)
            for g in self.q_dma(0, self.QSTEP[0]): A(*g)
            self.pstamp(3)
            self.srds_rest()
            self.addr_regs()
            self.pstamp(4)
            for g in self.q_dma(1, self.QSTEP[1]): A(*g)
            self.pstamp(5)
        A(f"s_add_u32 s{S_T0}, s{S_C}, s{S_WAVE}", f"s_and_b32 s{S_T0}, s{S_T0}, 3", f"s_lshl_b32 s{S_WOOFF}, s{S_T0}, 17")
        A(f"s_lshl_b32 s{S_WOLDS}, s{S_WAVE}, 15")
        A(f"s_mov_b32 s{S_KOFF}, {4*8192}", f"s_mov_b32 s{S_VOFF}, {3*8192}")
        self.stamp(1)
        if not lw: A("s_waitcnt vmcnt(12)" if "q0" not in self.dbg else "s_waitcnt vmcnt(0)")
        self.pstamp(6)
        A("s_barrier")
        self.pstamp(7)
        for r in self.q_reads(0, 0, nblk): A(r)
        self.stamp(2)
        for i in range(7):
            self.q_iter(i, nblk, lw)
            if "qst" in self.dbg and i in (0, 1, 2, 4): self.stamp({0: 3, 1: 4, 2: 5, 4: 6}[i])
        self.q_last(nblk, lw)
        self.stamp(3 if "qst" not in self.dbg else 7)
        self.lock = True
        if self.stage == 1:
            self.dump_frags(nblk, lambda b, c: ar(QF(b, c), 4)); A("s_branch L_end"); return
        self.attention(lw)
        self.stamp(5)
        if self.stage == 2:
            A("s_nop 7", "s_nop 7")
            self.normalize(nblk)
            self.dump_frags(nblk, lambda b, c: vr(OFR(b, c), 4))
            self.stamp(6); self.stamp(7)
            self.dump_stamps()
            A("s_branch L_end"); return
        self.tail(lw)
        self.tstamp("end")
        self.stamp(12)
        self.dump_stamps()
        A("s_branch L_end")

    def build(self):
        A = self.A
        hdr = []
        hdr.append(open("standalone__gqa_block_cached__near_ridge.s.ref").read().split("; Override")[0].rstrip())
        hdr.append(f"; @launch grid=(256,1,1) block=(256,1,1) lds={LDS_BYTES}")
        hdr.append('.amdgcn_target "amdgcn-amd-amdhsa--gfx950"')
        hdr.append(f".text\n.globl {NAME}\n.p2align 8\n.type {NAME},@function\n{NAME}:")
        self.prologue()
        self.path(False)
        self.path(True)
        A.label("L_end")
        A("s_endpgm")
        A.L = check_hazards(A.L, fix=True)
        tail = f""".section .rodata,"a"
.p2align 6
.amdhsa_kernel {NAME}
  .amdhsa_next_free_vgpr 512
  .amdhsa_next_free_sgpr 102
  .amdhsa_accum_offset 256
  .amdhsa_group_segment_fixed_size 0
  .amdhsa_kernarg_size 64
  .amdhsa_user_sgpr_count 2
  .amdhsa_user_sgpr_kernarg_segment_ptr 1
  .amdhsa_system_sgpr_workgroup_id_x 1
.end_amdhsa_kernel
"""
        return "\n".join(hdr) + "\n" + A.text() + tail

if __name__ == "__main__":
    stage = int(sys.argv[1]) if len(sys.argv) > 1 else 3
    out = sys.argv[2] if len(sys.argv) > 2 else "k.s"
    timing = len(sys.argv) > 3 and sys.argv[3] == "t"
    dbg = sys.argv[4].split(",") if len(sys.argv) > 4 else ()
    open(out, "w").write(Gen(stage, timing, dbg).build())
```

```python
import re

class Asm:
    def __init__(self):
        self.L = []
    def __call__(self, *lines):
        for s in lines:
            for t in s.split("\n"):
                t = t.strip()
                if t: self.L.append(t)
    def label(self, n): self.L.append(n + ":")
    def text(self):
        out = []
        for t in self.L:
            if t.endswith(":") or t.startswith(".") or t.startswith(";"): out.append(t)
            else: out.append("  " + t)
        return "\n".join(out) + "\n"

def vr(a, n=1, k="v"):
    return f"{k}{a}" if n == 1 else f"{k}[{a}:{a+n-1}]"
def ar(a, n=1): return vr(a, n, "a")
def sr(a, n=1): return vr(a, n, "s")

_reg = re.compile(r"\b([vas])(\d+)\b|\b([vas])\[(\d+):(\d+)\]")
def regs_of(op):
    out = []
    for m in _reg.finditer(op):
        if m.group(1): out.append((m.group(1), int(m.group(2))))
        else: out += [(m.group(3), i) for i in range(int(m.group(4)), int(m.group(5)) + 1)]
    return out

TRANS = ("v_exp_f32", "v_log_f32", "v_rcp_f32", "v_rsq_f32", "v_sqrt_f32", "v_sin_f32", "v_cos_f32")

def parse(line):
    line = line.split(";")[0].strip()
    if not line or line.endswith(":") or line.startswith("."): return None
    parts = line.split(None, 1)
    mn = parts[0]
    ops = [o.strip() for o in (parts[1] if len(parts) > 1 else "").split(",")]
    kind = "other"; dst = []; src = []
    if mn.startswith("v_mfma"):
        kind = "mfma"; dst = regs_of(ops[0]); src = regs_of(ops[1]) + regs_of(ops[2]); srcC = regs_of(ops[3])
        return (mn, dst, src, kind, srcC)
    if mn.startswith("v_cmp"):
        kind = "valu"; dst = regs_of(ops[0]); src = sum((regs_of(o) for o in ops[1:]), [])
    elif mn.startswith("v_permlane32_swap") or mn.startswith("v_permlane16_swap"):
        kind = "valu"; dst = regs_of(ops[0]) + regs_of(ops[1]); src = list(dst)
    elif mn.startswith("v_readfirstlane") or mn.startswith("v_readlane"):
        kind = "valu"; dst = regs_of(ops[0]); src = sum((regs_of(o) for o in ops[1:]), [])
    elif mn.startswith("v_"):
        kind = "valu"; dst = regs_of(ops[0]); src = sum((regs_of(o) for o in ops[1:]), [])
        if mn.startswith(("v_fmac", "v_pk_fmac", "v_dot2c")): src += dst
        if mn.startswith(("v_add_co", "v_addc_co", "v_sub_co")): src = sum((regs_of(o) for o in ops[2:]), [])
    elif mn.startswith("ds_read") or mn.startswith("ds_bpermute") or mn.startswith("ds_swizzle"):
        kind = "lds"; dst = regs_of(ops[0]); src = sum((regs_of(o) for o in ops[1:]), [])
    elif mn.startswith("ds_"):
        kind = "lds"; src = sum((regs_of(o) for o in ops), [])
    elif mn.startswith(("buffer_load", "global_load")):
        kind = "vmem"
        if " lds" in line or mn.startswith("global_load_lds"): src = sum((regs_of(o) for o in ops), [])
        else: dst = regs_of(ops[0]); src = sum((regs_of(o) for o in ops[1:]), [])
    elif mn.startswith(("buffer_store", "global_store", "global_atomic", "buffer_atomic")):
        kind = "vmem"; src = sum((regs_of(o) for o in ops), [])
        if "atomic" in mn and " sc0" in line: dst = regs_of(ops[0])
    elif mn.startswith("s_"):
        kind = "salu"
        if mn in ("s_nop",): kind = "nop"
    return (mn, dst, src, kind, [])

MFMA_WS = [4, 2]
def wait_states(line):
    p = line.split()
    if p[0] == "s_nop": return int(p[1]) + 1
    if p[0].startswith("v_mfma_f32_32x32x16"): return MFMA_WS[0]
    if p[0].startswith("v_mfma_f32_16x16x32"): return MFMA_WS[1]
    return 1

def check_hazards(lines, fix=False, name=""):
    out = []
    pos = 0
    last_mfma_d = {}
    last_mfma_d_full = {}
    last_mfma_c = {}
    last_valu_w = {}
    last_trans_w = {}
    last_store = {}
    last_sgpr_valu = {}
    last_m0 = -100
    probs = []
    for ln in lines:
        p = parse(ln)
        if p is None:
            out.append(ln); continue
        mn, dst, src, kind, srcC = p
        need = 0; why = ""
        def req(d, lastpos, n, w):
            nonlocal need, why
            gap = pos - lastpos - 1
            if gap < n and n - gap > need: need = n - gap; why = w
        if kind == "mfma":
            for r in src + srcC:
                if r in last_valu_w: req(2, last_valu_w[r], 2, f"VALU write {r} -> MFMA read")
            for r in src:
                if r in last_mfma_d: req(0, last_mfma_d[r], 12, f"MFMA D {r} -> MFMA A/B")
            cset = tuple(srcC)
            for r in srcC:
                if r in last_mfma_d:
                    lp, full = last_mfma_d_full[r]
                    if full != cset: req(0, lp, 10, f"MFMA D {r} -> MFMA C partial")
        elif kind in ("valu", "lds", "vmem"):
            allr = src + (dst if kind != "lds" else dst)
            for r in allr:
                if r in last_mfma_d and r[0] in "va": req(0, last_mfma_d[r], 12, f"MFMA D {r} -> {mn}")
            if kind == "valu":
                for r in dst:
                    if r in last_mfma_c: req(0, last_mfma_c[r], 7, f"MFMA C read {r} -> VALU write (WAR)")
                    if r in last_store: req(0, last_store[r], 2, f"store data {r} -> VALU write")
                if mn not in TRANS:
                    for r in src:
                        if r in last_trans_w: req(0, last_trans_w[r], 1, f"trans {r} -> {mn}")
                if mn.startswith("v_permlane"):
                    for r in src:
                        if r in last_valu_w: req(0, last_valu_w[r], 2, f"VALU {r} -> permlane")
                if mn.startswith(("v_readfirstlane", "v_readlane")):
                    for r in src:
                        if r in last_valu_w: req(0, last_valu_w[r], 1, f"VALU {r} -> readlane")
                for r in src:
                    if r[0] == "s" and r in last_sgpr_valu: req(0, last_sgpr_valu[r], 2, f"VALU sgpr {r} -> VALU read")
                if "vcc" in ln and mn.startswith(("v_cndmask", "v_addc")) and ("s", -1) in last_sgpr_valu: req(0, last_sgpr_valu[("s", -1)], 2, "vcc")
            if kind == "vmem":
                for r in src:
                    if r[0] == "s" and r in last_sgpr_valu: req(0, last_sgpr_valu[r], 5, f"VALU sgpr {r} -> VMEM")
                if " lds" in ln or mn.startswith("global_load_lds"): req(0, last_m0, 1, "m0 -> lds dma")
        if need > 0:
            if fix:
                n = need
                while n > 0:
                    k = min(n, 16); out.append(f"s_nop {k-1}"); pos += k; n -= k
            else:
                probs.append(f"[{name}] {ln}: need {need} more wait states ({why})")
        out.append(ln)
        if kind == "mfma":
            pe = pos + wait_states(ln) - 1
            for r in dst: last_mfma_d[r] = pe
            for r in dst: last_mfma_d_full[r] = (pe, tuple(dst))
            for r in srcC: last_mfma_c[r] = pe
            for r in dst: last_valu_w.pop(r, None); last_trans_w.pop(r, None)
        elif kind == "valu":
            for r in dst:
                if r[0] == "s": last_sgpr_valu[r] = pos
                else:
                    last_valu_w[r] = pos; last_mfma_d.pop(r, None)
                    if mn in TRANS: last_trans_w[r] = pos
                    else: last_trans_w.pop(r, None)
            if "vcc" in ln.split(None,1)[1].split(",")[0] or mn.startswith(("v_add_co","v_addc_co","v_sub_co")): last_sgpr_valu[("s", -1)] = pos
        elif kind in ("lds", "vmem"):
            for r in dst: last_mfma_d.pop(r, None); last_valu_w.pop(r, None); last_trans_w.pop(r, None)
            if kind == "vmem" and ("store_dwordx4" in mn or "store_dwordx3" in mn):
                ops = [o.strip() for o in ln.split(None,1)[1].split(",")]
                data = ops[1] if mn.startswith("global") else ops[0]
                for r in regs_of(data): last_store[r] = pos
        elif kind == "salu":
            ops = ln.split(None,1)
            if len(ops) > 1 and ops[1].split(",")[0].strip() == "m0": last_m0 = pos
            if len(ops) > 1:
                for r in regs_of(ops[1].split(",")[0]): last_sgpr_valu.pop(r, None)
        pos += wait_states(ln)
    if probs and not fix:
        raise Exception("HAZARDS:\n" + "\n".join(probs[:20]))
    return out
```

```python
import sys, struct
sys.path.insert(0, "dev")
from asmlib import *

NAME = "standalone__gqa_block_cached__near_ridge_kernel"
XOFF = 0; WOFF = XOFF + 28672; QBUF = 45056
RBASE = 98304
KSLOT = [139264, 155648, 122880, 131072]
VSLOT = [147456, 98304, 106496, 114688]
WOREG = [0, 32768, 65536]
SCRATCH = VSLOT[1]
LDS_BYTES = 163840
FLAG1 = 0; FLAG1B = 0x10000; FLAG2 = 0x20000; OFRAG = 0x100000; PART = 0x1200000; STAMPS = 0x4000000
SRD_X, SRD_WQ, SRD_K, SRD_V, SRD_WO = 4, 8, 12, 16, 20
S_OUT, S_DBG, S_WS = 24, 26, 28
S_WAVE, S_B, S_H, S_C, S_J, S_ROT, S_KC, S_CNT, S_T0, S_T1 = 30, 31, 32, 33, 34, 35, 36, 37, 38, 39
S_EP = 40
S_T2, S_T3 = 42, 43
KA0, KA1 = 44, 52
SLOT_SRD = [60, 64, 68, 72]
SRD_WS = 60; SRD_OUT = 64
SLOT_BASE = [76, 77, 78, 79]; SLOT_STRIDE = [80, 81, 82, 83]; SLOT_LDS = [84, 85, 86, 87]
S_KOFF, S_VOFF = 88, 89
S_WOOFF, S_WOLDS = 90, 91
S_TS = 92
V_LANE = 255
KADDR = 240; VADDR = 248
VOFFK = 228; VOFFV = 232; VOFFO = 233
V_LA, V_LB = 237, 238
V_T = [252, 253, 254, 239]
SA, SB = 128, 144
PA, PB = 160, 168
WADDR = 128; XADDR = 132; SLOTV = 136; RAWX = 152; RAWW = 156; XADDR2 = 160; WADDR2 = 164
V_ZERO = 192
V_EP = 196
VL16 = 204; W_LO = 205; W_MID = 209
def ACC(blk, db): return blk * 64 + db * 16
def WF(st, ks, db): return st * 64 + (ks * 4 + db) * 4
def XF(st, blk, ks): return 128 + st * 32 + (blk * 4 + ks) * 4
def QF(blk, c): return 128 + blk * 32 + c * 4
def KF(c): return 192 + c * 4
def VF(db, ks): return 224 + (ks * 4 + db) * 4
def OFR(blk, kk): return 128 + blk * 32 + kk * 4
def PFR(o, blk, kk): return (o - 1) * 64 + blk * 32 + kk * 4
def WOF(par, nb): return 192 + par * 16 + nb * 4
QSCALE = 0.08838834764831845 * 1.4426950408889634
def f2u(x): return struct.unpack("<I", struct.pack("<f", x))[0]
MFMA = "v_mfma_f32_32x32x16_bf16"

class Gen:
    def __init__(self, stage=3, timing=False, dbg=()):
        self.A = Asm(); self.stage = stage; self.timing = timing; self.dbg = set(dbg); self.uid = 0

    def lab(self, p):
        self.uid += 1; return f"L_{p}{self.uid}"

    def weave(self, mfmas, gaps, pre=None):
        A = self.A
        for i, (m, g) in enumerate(zip(mfmas, gaps)):
            if pre and i in pre:
                for x in pre[i]: A(x)
            if m: A(m)
            for x in g: A(x)

    def tstamp(self, name):
        order = {"tst": ["T0", "bar0", "st1", "own", "ack1", "poll1", "phA", "phB"], "tst2": ["T0", "phB", "ack2", "poll2", "ld2", "end", "x", "y"]}
        for k, lst in order.items():
            if k in self.dbg and self.timing and name in lst:
                self.A("s_memtime s[100:101]", "s_waitcnt lgkmcnt(0)", f"s_mov_b32 s{S_TS+lst.index(name)}, s100")

    def rstamp(self, slot):
        if "tst2" in self.dbg and self.timing:
            self.A("s_memrealtime s[100:101]", "s_waitcnt lgkmcnt(0)", f"s_mov_b32 s{S_TS+slot}, s100")

    def pstamp(self, idx):
        if "pro" in self.dbg and self.timing:
            self.A("s_memtime s[100:101]", "s_waitcnt lgkmcnt(0)", f"s_mov_b32 s{S_TS+idx}, s100")

    def stamp(self, idx):
        if "pro" in self.dbg and idx != 0: return
        if "tst" in self.dbg or "tst2" in self.dbg: return
        if "qst" in self.dbg and getattr(self, "lock", False): return
        if self.stage >= 3 and "qst" not in self.dbg:
            idx = {0: 0, 2: 1, 3: 2, 5: 3, 10: 4, 11: 5, 7: 6, 12: 7}.get(idx)
            if idx is None: return
        if self.timing:
            self.A("s_memtime s[100:101]", "s_waitcnt lgkmcnt(0)", f"s_mov_b32 s{S_TS+idx}, s100")

    def dump_stamps(self):
        if not self.timing: return
        A = self.A
        A("s_memrealtime s[100:101]", "s_waitcnt lgkmcnt(0)")
        A(f"s_lshl_b32 s{S_T0}, s2, 2", f"s_add_u32 s{S_T0}, s{S_T0}, s{S_WAVE}", f"s_lshl_b32 s{S_T0}, s{S_T0}, 6", f"s_add_u32 s{S_T0}, s{S_T0}, {STAMPS:#x}")
        A(f"v_mov_b32 v20, s{S_T0}")
        for i in range(8): A(f"v_mov_b32 v{4+i}, s{S_TS+i}")
        A(f"v_mov_b32 v12, s3", "v_mov_b32 v13, s100", "v_mov_b32 v14, 0", "v_mov_b32 v15, 0")
        A(f"v_cmp_eq_u32 vcc, 0, v{V_LANE}", "s_and_saveexec_b64 s[100:101], vcc")
        for i in range(3): A(f"global_store_dwordx4 v20, v[{4+4*i}:{7+4*i}], s[{S_WS}:{S_WS+1}] offset:{16*i}")
        A("s_waitcnt vmcnt(0)", "s_mov_b64 exec, s[100:101]")

    def prologue(self):
        A = self.A
        A("s_cmp_ge_u32 s2, 256", "s_cbranch_scc1 L_end")
        if self.timing:
            A("s_memrealtime s[100:101]", "s_waitcnt lgkmcnt(0)", "s_mov_b32 s3, s100")
            self.stamp(0)
        A(f"s_load_dwordx8 s[{KA0}:{KA0+7}], s[0:1], 0", f"s_load_dwordx8 s[{KA1}:{KA1+7}], s[0:1], 32")
        A("v_lshrrev_b32 v1, 6, v0", f"v_and_b32 v{V_LANE}, 63, v0")
        A(f"v_readfirstlane_b32 s{S_WAVE}, v1")
        A("s_nop 3")
        if "nocodepf" not in self.dbg:
            A(f"v_and_b32 v20, 15, v{V_LANE}", f"s_lshr_b32 s{S_T0}, s2, 3", f"s_lshl_b32 s{S_T0}, s{S_T0}, 4")
            A(f"s_cmp_lg_u32 s{S_WAVE}, 3", "s_cbranch_scc1 L_nopf")
            A("s_getpc_b64 s[100:101]")
            A.label("L_pc0")
            A(f"s_sub_u32 s100, s100, L_pc0-{NAME}", "s_subb_u32 s101, s101, 0")
            A(f"v_add_u32 v20, s{S_T0}, v20", "v_lshlrev_b32 v20, 7, v20")
            A(f"v_min_u32 v20, L_end-{NAME}, v20", "global_load_dword v21, v20, s[100:101]")
            A.label("L_nopf")
        A(f"s_and_b32 s{S_J}, s2, 7", f"s_lshr_b32 s{S_C}, s2, 3", f"s_and_b32 s{S_C}, s{S_C}, 3", f"s_lshr_b32 s{S_B}, s2, 5")
        A(f"s_lshl_b32 s{S_H}, s{S_J}, 2", f"s_add_u32 s{S_H}, s{S_H}, s{S_C}")
        A(f"s_lshl_b32 s{S_ROT}, s{S_C}, 1", f"s_add_u32 s{S_ROT}, s{S_ROT}, s{S_B}", f"s_and_b32 s{S_ROT}, s{S_ROT}, 7")
        L = V_LANE
        A(f"v_lshrrev_b32 v2, 4, v{L}", f"v_and_b32 v3, 15, v{L}", f"v_and_b32 v4, 31, v{L}", f"v_lshrrev_b32 v5, 5, v{L}")
        A("v_lshrrev_b32 v6, 2, v3", "v_and_b32 v7, 3, v3")
        A("v_lshlrev_b32 v8, 2, v2", "v_xor_b32 v8, v8, v3", "v_lshlrev_b32 v8, 4, v8")
        A(f"v_lshl_add_u32 v{RAWW}, v2, 13, v8")
        for j in range(1, 4): A(f"v_add_u32 v{RAWW+j}, {j*31744}, v{RAWW}")
        A(f"v_and_b32 v9, 7, v{L}", "v_xor_b32 v9, v9, v2", "v_lshlrev_b32 v9, 4, v9", f"v_lshrrev_b32 v10, 3, v{L}")
        A(f"v_lshl_add_u32 v{RAWX}, v10, 10, v9")
        A(f"v_xor_b32 v{RAWX+1}, 64, v{RAWX}", f"v_add_u32 v{RAWX+1}, 7168, v{RAWX+1}")
        A(f"v_add_u32 v{RAWX+2}, 14336, v{RAWX}")
        A(f"v_add_u32 v{RAWX+3}, 14336, v{RAWX+1}")
        self.q_slots_pre()
        A(f"s_mov_b32 s{SLOT_SRD[0]+3}, 0x20000")
        A("s_waitcnt lgkmcnt(0)")
        self.pstamp(1)
        x, k, v, wq, wo = KA0, KA0+2, KA0+4, KA0+6, KA1
        A(f"s_mul_i32 s{S_T0}, s{S_B}, 229376")
        A(f"s_add_u32 s{SRD_X}, s{x}, s{S_T0}", f"s_addc_u32 s{SRD_X+1}, s{x+1}, 0", f"s_mov_b32 s{SRD_X+2}, 229376", f"s_mov_b32 s{SRD_X+3}, 0x20000")
        A(f"s_lshl_b32 s{S_T0}, s{S_H}, 8")
        A(f"s_add_u32 s{SRD_WQ}, s{wq}, s{S_T0}", f"s_addc_u32 s{SRD_WQ+1}, s{wq+1}, 0", f"s_sub_u32 s{SRD_WQ+2}, 0x400000, s{S_T0}", f"s_mov_b32 s{SRD_WQ+3}, 0x20000")
        A(f"s_cmp_eq_u32 s{S_WAVE}, 3", "s_cbranch_scc1 L_LW")

    def srds_rest(self):
        A = self.A
        x, k, v, wq, wo = KA0, KA0+2, KA0+4, KA0+6, KA1
        A(f"s_lshl_b32 s{S_T0}, s{S_B}, 5", f"s_add_u32 s{S_T0}, s{S_T0}, s{S_H}", f"s_lshl_b32 s{S_T0}, s{S_T0}, 18")
        A(f"s_add_u32 s{SRD_K}, s{k}, s{S_T0}", f"s_addc_u32 s{SRD_K+1}, s{k+1}, 0", f"s_mov_b32 s{SRD_K+2}, 0x40000", f"s_mov_b32 s{SRD_K+3}, 0x20000")
        A(f"s_add_u32 s{SRD_V}, s{v}, s{S_T0}", f"s_addc_u32 s{SRD_V+1}, s{v+1}, 0", f"s_mov_b32 s{SRD_V+2}, 0x40000", f"s_mov_b32 s{SRD_V+3}, 0x20000")
        A(f"s_lshl_b32 s{S_T0}, s{S_J}, 19", f"s_lshl_b32 s{S_T1}, s{S_C}, 8", f"s_add_u32 s{S_T0}, s{S_T0}, s{S_T1}")
        A(f"s_add_u32 s{SRD_WO}, s{wo}, s{S_T0}", f"s_addc_u32 s{SRD_WO+1}, s{wo+1}, 0", f"s_sub_u32 s{SRD_WO+2}, 0x400000, s{S_T0}", f"s_mov_b32 s{SRD_WO+3}, 0x20000")
        A(f"s_mov_b64 s[{S_OUT}:{S_OUT+1}], s[{KA1+2}:{KA1+3}]", f"s_mov_b64 s[{S_DBG}:{S_DBG+1}], s[{KA1+4}:{KA1+5}]", f"s_mov_b64 s[{S_WS}:{S_WS+1}], s[{KA1+6}:{KA1+7}]")

    def addr_regs(self):
        A = self.A
        A(f"v_lshl_add_u32 v{VOFFV}, v2, 8, v8")
        A("v_xor_b32 v9, v3, v2", "v_lshlrev_b32 v9, 4, v9", f"v_lshl_add_u32 v{VOFFK}, v2, 8, v9")
        for j in range(1, 4): A(f"v_xor_b32 v{VOFFK+j}, {j<<6}, v{VOFFK}")
        A(f"v_lshl_add_u32 v{VOFFO}, v2, 10, v8")
        for j in range(1, 4): A(f"v_add_u32 v{VOFFO+j}, {j*3072}, v{VOFFO}")
        A("v_and_b32 v9, 15, v4", "v_xor_b32 v9, v9, v5", "v_lshlrev_b32 v9, 4, v9", "v_lshl_add_u32 v9, v4, 8, v9", f"v_add_u32 v{KADDR}, {RBASE}, v9")
        for c in range(1, 8): A(f"v_xor_b32 v{KADDR+c}, {c<<5}, v{KADDR}")
        A("v_and_b32 v10, 1, v2", "v_lshlrev_b32 v10, 1, v10", "v_lshlrev_b32 v11, 2, v6", "v_or_b32 v10, v10, v11")
        A("v_lshrrev_b32 v11, 1, v7", "v_or_b32 v11, v11, v10", "v_lshlrev_b32 v11, 4, v11")
        A("v_and_b32 v12, 1, v7", "v_lshl_add_u32 v11, v12, 3, v11")
        A("v_lshl_add_u32 v12, v5, 2, v6", "v_lshl_add_u32 v11, v12, 8, v11", f"v_add_u32 v{VADDR}, {RBASE}, v11")
        for d in range(1, 4): A(f"v_xor_b32 v{VADDR+d}, {d<<6}, v{VADDR}")
        A("v_and_b32 v11, 1, v7", "v_or_b32 v11, v11, v10", "v_lshlrev_b32 v11, 4, v11")
        A("v_lshrrev_b32 v12, 1, v7", "v_lshl_add_u32 v11, v12, 3, v11")
        A("v_lshl_add_u32 v12, v5, 3, v6", "v_lshl_add_u32 v11, v12, 8, v11", f"v_add_u32 v{WADDR}, {WOFF}, v11")
        for d in range(1, 4): A(f"v_xor_b32 v{WADDR+d}, {d<<6}, v{WADDR}")
        A("v_lshrrev_b32 v11, 1, v4", "v_and_b32 v11, 7, v11", "v_xor_b32 v11, v11, v5", "v_lshlrev_b32 v11, 4, v11", "v_lshl_add_u32 v11, v4, 7, v11")
        A(f"s_lshl_b32 s{S_T0}, s{S_WAVE}, 13", f"s_add_u32 s{S_T0}, s{S_T0}, {XOFF}", f"v_add_u32 v{XADDR}, s{S_T0}, v11")
        for ks in range(1, 4): A(f"v_xor_b32 v{XADDR+ks}, {ks<<5}, v{XADDR}")
        for r in range(4):
            A(f"v_add_u32 v{XADDR2+r}, {2*QBUF}, v{XADDR+r}", f"v_add_u32 v{WADDR2+r}, {2*QBUF}, v{WADDR+r}")
        for r in range(4): A(f"v_mov_b32 v{V_ZERO+r}, 0")
        A(f"v_mov_b32 v{V_LA}, 0", f"v_mov_b32 v{V_LB}, 0")

    def q_slots_pre(self):
        A = self.A
        XB, XL, WB, WL, EB, ES, EL = 76, 77, 78, 79, 80, 81, 82
        A(f"s_lshl_b32 s{XB}, s{S_WAVE}, 16", f"s_lshl_b32 s{XL}, s{S_WAVE}, 13", f"s_lshl_b32 s{WB}, s{S_WAVE}, 17")
        A(f"s_lshl_b32 s{WL}, s{S_WAVE}, 12", f"s_add_u32 s{WL}, s{WL}, {WOFF}")
        A(f"s_cmp_eq_u32 s{S_WAVE}, 0")
        A(f"s_cselect_b32 s{ES}, 7, 19")
        A(f"s_cselect_b64 s[{S_T2}:{S_T3}], -1, 0")
        A(f"s_cselect_b32 s{EB}, 6, 12", f"s_cselect_b32 s{EL}, 0, {WOFF + 3*4096 - 6*4096}")
        A(f"s_lshl_b32 s{EB}, s{EB}, 15", f"s_add_u32 s{EL}, s{EL}, {6*4096}")
        for j in range(4): A(f"v_cndmask_b32 v{SLOTV+j}, v{RAWW+j}, v{RAWX+j}, s[{S_T2}:{S_T3}]")

    def q_slots_post(self):
        A = self.A
        A(f"s_cmp_eq_u32 s{S_WAVE}, 0")
        for w in range(3): A(f"s_cselect_b32 s{SLOT_SRD[0]+w}, s{SRD_X+w}, s{SRD_WQ+w}")

    def q_dma(self, buf, step):
        XB, XL, WB, WL, EB, ES, EL = 76, 77, 78, 79, 80, 81, 82
        nt = " nt" if "qnt" in self.dbg else ""
        def loads(v, srd): return [f"buffer_load_dwordx4 v{v+j}, s[{srd}:{srd+3}], s{S_T0} offen offset:{j*1024}{nt} lds" for j in range(4)]
        out = []
        out.append([f"s_lshl_b32 s{S_T1}, s{S_KC}, 7", f"s_add_u32 m0, s{XL}, {buf*QBUF}", f"s_add_u32 s{S_T0}, s{XB}, s{S_T1}"] + loads(RAWX, SRD_X))
        out.append([f"s_add_u32 m0, s{XL}, {buf*QBUF + 4096}", f"s_add_u32 s{S_T0}, s{S_T0}, 32768"] + loads(RAWX, SRD_X))
        out.append([f"s_lshl_b32 s{S_T1}, s{S_KC}, 19", f"s_add_u32 m0, s{WL}, {buf*QBUF}", f"s_add_u32 s{S_T0}, s{WB}, s{S_T1}"] + loads(RAWW, SRD_WQ))
        lb = self.lab("qskip")
        out.append([f"s_cmp_eq_u32 s{S_WAVE}, 2", f"s_cbranch_scc1 {lb}", f"s_lshl_b32 s{S_T1}, s{S_KC}, s{ES}", f"s_add_u32 m0, s{EL}, {buf*QBUF}", f"s_add_u32 s{S_T0}, s{EB}, s{S_T1}"]
                   + loads(SLOTV, SLOT_SRD[0]) + [lb + ":"])
        out.append([f"s_add_u32 s{S_KC}, s{S_KC}, {step}", f"s_and_b32 s{S_KC}, s{S_KC}, 7"])
        return out

    def q_reads(self, st, buf, nblk):
        rd = []
        xa, wa, bo = (XADDR, WADDR, buf * QBUF) if buf < 2 else (XADDR2, WADDR2, 0)
        for ks in range(4):
            for blk in range(nblk):
                rd.append(f"ds_read_b128 {ar(XF(st,blk,ks),4)}, v{xa+ks} offset:{bo + blk*4096}")
            for db in range(4):
                for jh in range(2):
                    rd.append(f"ds_read_b64_tr_b16 {ar(WF(st,ks,db)+2*jh,2)}, v{wa+db} offset:{bo + ks*4096 + jh*1024}")
        return rd

    KVSEQ = [("K",0),("V",0),("K",1),("V",1),("K",2),("V",2),("K",3)]

    KVQ = {4: [("K",0)], 5: [("V",0), ("K",1)], 6: [("V",1), ("K",2)]}

    KVQ = {4: [("K",0)], 5: [("V",0), ("K",1)], 6: [("V",1), ("K",2)]}
    QSTEP = [2, 2, 2, 3, 2, 2, 2, 2]

    def spread_dma(self, groups, gaps, lo, hi):
        nload = sum(1 for g in groups for x in g if x.startswith("buffer_load"))
        pos = 0
        def at(): return min(hi, lo + pos * (hi - lo + 1) // max(1, nload))
        for g in groups:
            if any(x.startswith("s_cbranch") for x in g):
                gaps[at()] += g; pos += 4; continue
            pend = []
            for x in g:
                pend.append(x)
                if x.startswith("buffer_load"):
                    gaps[at()] += pend; pend = []; pos += 1
            if pend: gaps[at()] += pend

    def q_iter(self, i, nblk, lw):
        st = i & 1
        mf = []
        for ks in range(4):
            for db in range(4):
                for blk in range(nblk):
                    a = ACC(blk, db)
                    c = "0" if (i == 0 and ks == 0) else vr(a, 16)
                    mf.append(f"{MFMA} {vr(a,16)}, {ar(WF(st,ks,db),4)}, {ar(XF(st,blk,ks),4)}, {c}")
        n = len(mf)
        gaps = [[] for _ in range(n)]
        if not lw: gaps[0].append("s_waitcnt vmcnt(12)" if 1 <= i <= 5 else "s_waitcnt vmcnt(0)")
        gaps[0].append("s_barrier")
        rds = self.q_reads(st ^ 1, (i + 1) % 3, nblk)
        span = n - 4 if not lw else n - 2
        for idx, r in enumerate(rds): gaps[1 + idx * span // len(rds)].append(r)
        if not lw:
            if i == 0:
                self.spread_dma(self.q_dma(2, self.QSTEP[2]), gaps, 1, 15)
                self.spread_dma(self.q_dma(0, self.QSTEP[3]), gaps, 16, 30)
            elif i + 3 <= 7:
                self.spread_dma(self.q_dma(i % 3, self.QSTEP[i + 3]), gaps, 1, 29)
        else:
            dm = []
            for kind, t in self.KVQ.get(i, []): dm += self.tile_dma(kind, t % 4, f"{t*8192}")
            if dm:
                per = -(-len(dm) // (n - 2))
                for idx, x in enumerate(dm): gaps[1 + idx // per].append(x)
        self.A("s_waitcnt lgkmcnt(0)")
        self.weave(mf, gaps)

    def q_last(self, nblk, lw):
        A = self.A
        st = 1
        tiles = [(blk, db) for blk in range(nblk) for db in range(4)]
        mf = []
        for blk, db in tiles:
            a = ACC(blk, db)
            for ks in range(4):
                mf.append(f"{MFMA} {vr(a,16)}, {ar(WF(st,ks,db),4)}, {ar(XF(st,blk,ks),4)}, {vr(a,16)}")
        nt = len(tiles)
        conv = []
        for blk, db in tiles:
            a = ACC(blk, db); c = []
            for r in range(a, a + 16): c.append(f"v_mul_f32 v{r}, s{S_T2}, v{r}")
            for u in range(2):
                for pj in range(4):
                    r = a + 8*u + 2*pj
                    c.append(f"v_cvt_pk_bf16_f32 v{r}, v{r}, v{r+1}")
            for u in range(2):
                for pj in range(4):
                    r = a + 8*u + 2*pj
                    c.append(f"v_accvgpr_write_b32 a{QF(blk, 2*db+u)+pj}, v{r}")
            conv.append(c)
        zero = [f"{MFMA} {vr(ACC(blk,db),16)}, {vr(V_ZERO,4)}, {vr(V_ZERO,4)}, 0" for blk, db in tiles]
        A(f"s_mov_b32 s{S_T2}, {f2u(QSCALE):#x}", "s_waitcnt lgkmcnt(0)")
        stream = []
        late = []
        for ti in range(nt):
            for ins in conv[ti]:
                ms = 4 * ti + 3 + 3
                if "accvgpr_write" in ins and tiles[ti][0] == 1: late.append((4 * nt, ins, ti))
                else: stream.append((ms, ins, ti))
        stream += late
        slots = mf + zero
        gaps = [[] for _ in slots]
        pos = 0
        done_tile = [0] * nt
        remaining = [len(c) for c in conv]
        out_m = []; out_g = []
        si = 0
        for s in range(len(mf)):
            g = []
            while si < len(stream) and stream[si][0] <= s and len(g) < 5:
                g.append(stream[si][1]); remaining[stream[si][2]] -= 1; si += 1
            out_m.append(mf[s]); out_g.append(g)
        kb = len(mf) - 3
        if lw:
            dm = self.tile_dma("V", 2, f"{2*8192}") + self.tile_dma("K", 3, f"{3*8192}")
            for idx, x in enumerate(dm): out_g[idx * kb // len(dm)].insert(sum(1 for j in range(idx) if j * kb // len(dm) == idx * kb // len(dm)), x)
        bar = (["s_waitcnt vmcnt(48)" if "kv0" not in self.dbg else "s_waitcnt vmcnt(0)"] if lw else []) + ["s_barrier"]
        self.weave(out_m[:kb], out_g[:kb])
        A(out_m[kb]);
        for x in bar: A(x)
        for c in range(8): A(f"ds_read_b128 {ar(KF(c),4)}, v{KADDR+c} offset:{KSLOT[0]-RBASE}")
        for x in out_g[kb]: A(x)
        self.weave(out_m[kb+1:], out_g[kb+1:])
        zi = 0
        while si < len(stream) or zi < nt:
            if zi < nt and remaining[zi] == 0:
                A(zero[zi]); zi += 1
                continue
            cnt = 0
            while si < len(stream) and cnt < 6:
                A(stream[si][1]); remaining[stream[si][2]] -= 1; si += 1; cnt += 1
                if zi < nt and remaining[zi] == 0: break

    def dump_frags(self, nblk, fn):
        A = self.A
        A(f"s_lshl_b32 s{S_T0}, s2, 16", f"s_lshl_b32 s{S_T1}, s{S_WAVE}, 14", f"s_add_u32 s{S_T0}, s{S_T0}, s{S_T1}", f"s_add_u32 s{S_T0}, s{S_T0}, {OFRAG:#x}")
        A(f"v_lshlrev_b32 v{V_T[2]}, 4, v{V_LANE}", f"v_add_u32 v{V_T[2]}, s{S_T0}, v{V_T[2]}")
        for blk in range(nblk):
            for c in range(8):
                A(f"v_add_u32 v{V_T[3]}, {(blk*8+c)*1024}, v{V_T[2]}")
                A(f"global_store_dwordx4 v{V_T[3]}, {fn(blk,c)}, s[{S_WS}:{S_WS+1}]")
        A("s_waitcnt vmcnt(0)")

    def tile_dma(self, kind, slot, soff, nt=True):
        out = []
        if "nont" in self.dbg: nt = False
        base = (KSLOT if kind == "K" else VSLOT)[slot]
        srd = SRD_K if kind == "K" else SRD_V
        for g in range(2):
            out.append(f"s_add_u32 s{S_T1}, {soff}, {g*4096}" if not soff.isdigit() else f"s_mov_b32 s{S_T1}, {int(soff)+g*4096}")
            out.append(f"s_mov_b32 m0, {base + g*4096}")
            for j in range(4):
                vo = VOFFK + j if kind == "K" else VOFFV
                out.append(f"buffer_load_dwordx4 v{vo}, s[{srd}:{srd+3}], s{S_T1} offen offset:{j*1024}{' nt' if nt else ''} lds")
        res = []
        i = 0
        while i < len(out):
            res += [out[i+1], out[i]] + out[i+2:i+6]; i += 6
        return res

    def sm_items(self, blk, exp_gaps, lo=0, hi=16, extra_add=(), extra_cvt=(), skip=(15,)):
        S = SA if blk == 0 else SB; P = PA if blk == 0 else PB; Lr = V_LA if blk == 0 else V_LB
        out = {}
        def put(g, prio, ins):
            while g in skip: g += 1
            out.setdefault(g, []).append((prio, ins))
        for e in extra_add: put(0, 1, f"v_add_f32 v{Lr}, v{S+e}, v{Lr}")
        for p in extra_cvt: put(0, 2, f"v_cvt_pk_bf16_f32 v{P+p}, v{S+2*p}, v{S+2*p+1}")
        for i in range(lo, hi):
            g = exp_gaps[i - lo]
            put(g, 0, f"v_exp_f32 v{S+i}, v{S+i}")
            put(g + 1, 1, f"v_add_f32 v{Lr}, v{S+i}, v{Lr}")
            if i & 1:
                put(g + 1, 2, f"v_cvt_pk_bf16_f32 v{P+i//2}, v{S+i-1}, v{S+i}")
        return out

    def attn_iter(self, t, lw):
        A = self.A
        tm = t % 4
        do_qk = t + 1 <= 31; do_pv = t >= 0
        do_kr = t + 2 <= 31; do_vr = 0 <= t + 1 <= 31
        def qk(blk):
            S = SA if blk == 0 else SB
            return [f"{MFMA} {vr(S,16)}, {ar(KF(c),4)}, {ar(QF(blk,c),4)}, {'0' if c == 0 else vr(S,16)}" for c in range(8)] if do_qk else [None]*8
        def pv(blk):
            P = PA if blk == 0 else PB
            return [f"{MFMA} {vr(ACC(blk,db),16)}, {ar(VF(db,ks),4)}, {vr(P+4*ks,4)}, {vr(ACC(blk,db),16)}" for ks in range(2) for db in range(4)] if do_pv else [None]*8
        mf = qk(0) + pv(0) + (qk(1) + pv(1) if not lw else [None]*16)
        gaps = [[] for _ in range(33)]
        def merge(d):
            for g, lst in d.items():
                if g < 32: gaps[g] += lst
        BEXP = [28,29,30,31] + list(range(0,12))
        AEXP = [12,13,13,14] + list(range(16,28))
        if not lw:
            if t >= 0: merge(self.sm_items(1, BEXP[4:], lo=4, hi=16, extra_add=(3,), extra_cvt=(1,)))
            if do_qk:
                merge(self.sm_items(0, AEXP))
                merge(self.sm_items(1, BEXP[:4], lo=0, hi=4))
        else:
            if do_qk: merge(self.sm_items(0, AEXP))
        gl = [[ins for _, ins in sorted(g, key=lambda x: x[0])] for g in gaps]
        mem = [[] for _ in range(33)]
        kslot = (t + 2) % 4; vslot = (t + 1) % 4
        kr = [f"ds_read_b128 {ar(KF(c),4)}, v{KADDR+c} offset:{KSLOT[kslot]-RBASE}" for c in range(8)] if do_kr else []
        vrd = []
        if do_vr:
            for ks in range(2):
                for db in range(4):
                    for jh in range(2):
                        vrd.append(f"ds_read_b64_tr_b16 {ar(VF(db,ks)+2*jh,2)}, v{VADDR+db} offset:{VSLOT[vslot]-RBASE + ks*4096 + jh*2048}")
        if not lw:
            for c, r in enumerate(kr): mem[16 + c].append(r)
            for i, r in enumerate(vrd): mem[24 + i // 2].append(r)
        else:
            for c, r in enumerate(kr): mem[16 + c // 2].append(r)
            for i, r in enumerate(vrd): mem[20 + i // 4].append(r)
        bar = []
        if lw:
            w = ({28: 24, 29: 24, 30: 24} if self.stage >= 3 else {28: 24, 29: 8, 30: 0}).get(t, 32)
            if "kv0" in self.dbg: w = 0
            if t <= 30: bar.append(f"s_waitcnt vmcnt({w})")
        bar.append("s_barrier")
        if "dly" in self.dbg: bar += ["s_nop 15"] * 6
        if "kv16" in self.dbg and lw: bar = [x.replace("vmcnt(32)", "vmcnt(16)").replace("vmcnt(24)", "vmcnt(8)") for x in bar]
        mem[15] = bar
        if lw:
            dm = []
            kpart = self.tile_dma("K", (t + 1) % 4, f"s{S_KOFF}") + [f"s_add_u32 s{S_KOFF}, s{S_KOFF}, 8192"]
            vpart = self.tile_dma("V", t % 4, f"s{S_VOFF}") + [f"s_add_u32 s{S_VOFF}, s{S_VOFF}, 8192"]
            if self.inloop and tm == 3:
                lb = self.lab("nok")
                dm = [f"s_cmp_eq_u32 s{S_CNT}, 6", f"s_cbranch_scc1 {lb}"] + kpart + [lb + ":"] + vpart
            elif t <= 26: dm = kpart + vpart
            elif t == 28 and self.stage >= 3: dm = self.wo_tile_dma(3, 0) + self.wo_tile_dma(3, 1)
            elif t in (29, 30) and self.stage >= 3: dm = self.wo_tile_dma(3, t - 27)
            mem[16] = dm + mem[16]
        if (not lw) and self.stage >= 3 and (t == -1 or (tm == 0 and 0 <= t <= 24)):
            dm = self.wo_group_dma()
            for i, x in enumerate(dm): mem[1 + i // 3].append(x)
        if t == 28 and self.stage >= 3 and lw:
            A(f"v_mov_b32 v{V_EP+6}, 0", f"global_load_dwordx2 v[{V_EP}:{V_EP+1}], v{V_EP+6}, s[{S_DBG}:{S_DBG+1}] sc1")
        if do_qk: A("s_waitcnt lgkmcnt(15)" if t >= 0 else "s_waitcnt lgkmcnt(0)")
        for g in range(32):
            if g == 8 and do_pv: A("s_waitcnt lgkmcnt(0)")
            if mf[g]: A(mf[g])
            for x in mem[g]: A(x)
            for x in gl[g]: A(x)

    def wo_tile_dma(self, o, tile):
        out = []
        for g in range(2):
            out.append(f"s_mov_b32 m0, {KSLOT[tile] + g*4096}")
            out.append(f"s_add_u32 s{S_T1}, s{S_WOOFF}, {tile*32768 + g*16384}")
            for j in range(4):
                out.append(f"buffer_load_dwordx4 v{VOFFO+j}, s[{SRD_WO}:{SRD_WO+3}], s{S_T1} offen offset:{j*1024}{' nt' if 'wont' in self.dbg else ''} lds")
        return out

    def wo_group_dma(self):
        out = [f"s_mov_b32 m0, s{S_WOLDS}", f"s_add_u32 s{S_WOLDS}, s{S_WOLDS}, 4096"]
        for j in range(4):
            out.append(f"buffer_load_dwordx4 v{VOFFO+j}, s[{SRD_WO}:{SRD_WO+3}], s{S_WOOFF} offen offset:{j*1024}{' nt' if 'wont' in self.dbg else ''} lds")
        out.append(f"s_add_u32 s{S_WOOFF}, s{S_WOOFF}, 16384")
        return out

    def attention(self, lw):
        A = self.A
        tag = "LW" if lw else "CW"
        if self.stage >= 3: self.tail_setup()
        self.inloop = False
        self.attn_iter(-1, lw)
        self.stamp(4)
        A(f"s_mov_b32 s{S_CNT}, 0")
        A(".p2align 4")
        A.label(f"L_attn_{tag}")
        start = len(A.L)
        self.inloop = True
        for t in range(4): self.attn_iter(t, lw)
        self.inloop = False
        body = A.L[start:]
        check_hazards(body + body, fix=False, name="attn loop " + tag)
        A(f"s_add_u32 s{S_CNT}, s{S_CNT}, 1", f"s_cmp_lt_u32 s{S_CNT}, 7", f"s_cbranch_scc1 L_attn_{tag}")
        for t in range(28, 32): self.attn_iter(t, lw)

    def l_combine(self, nblk):
        A = self.A
        R = [252, 254]
        for blk in range(nblk):
            Lr = V_LA if blk == 0 else V_LB
            A(f"v_mov_b32 v{R[blk]}, v{Lr}")
        A("s_nop 1")
        for blk in range(nblk):
            Lr = V_LA if blk == 0 else V_LB
            A(f"v_permlane32_swap_b32 v{Lr}, v{R[blk]}")
        for blk in range(nblk):
            Lr = V_LA if blk == 0 else V_LB
            A(f"v_add_f32 v{Lr}, v{Lr}, v{R[blk]}")
        for blk in range(nblk):
            Lr = V_LA if blk == 0 else V_LB
            A(f"v_rcp_f32 v{R[blk]}, v{Lr}")
        A("s_nop 0")

    def norm_block(self, blk):
        R = [252, 254][blk]
        out = []
        for db in range(4):
            a = ACC(blk, db)
            for r in range(a, a + 16, 2): out.append(f"v_pk_mul_f32 v[{r}:{r+1}], v[{r}:{r+1}], v[{R}:{R+1}] op_sel_hi:[1,0]")
            for u in range(2):
                for pj in range(4):
                    r = a + 8*u + 2*pj
                    out.append(f"v_cvt_pk_bf16_f32 v{OFR(blk, 2*db+u)+pj}, v{r}, v{r+1}")
        return out

    def normalize(self, nblk):
        self.l_combine(nblk)
        for blk in range(nblk):
            for x in self.norm_block(blk): self.A(x)

    def poll(self, nflags, vaddr_reg):
        A = self.A
        lp = self.lab("poll"); done = self.lab("polld")
        D = [214, 216, 218, 220]
        ld = lambda k: f"buffer_load_dwordx2 v[{D[k]}:{D[k]+1}], v{vaddr_reg}, s[{SRD_WS}:{SRD_WS+3}], 0 offen sc1"
        A(f"s_mov_b64 s[{S_T2}:{S_T3}], exec", f"s_mov_b64 exec, {(1 << nflags) - 1}")
        A(f"s_mov_b32 s{S_CNT}, 0")
        for k in range(3): A(ld(k), "s_nop 15", "s_nop 15")
        A.label(lp)
        for k in range(4):
            A(ld((k + 3) & 3))
            A("s_waitcnt vmcnt(3)")
            A(f"v_cmp_ne_u64 vcc, s[{S_EP}:{S_EP+1}], v[{D[k]}:{D[k]+1}]")
            A("s_nop 4")
            A(f"s_cbranch_vccz {done}")
        A(f"s_add_u32 s{S_CNT}, s{S_CNT}, 1", f"s_cmp_gt_u32 s{S_CNT}, 0x10000", f"s_cbranch_scc0 {lp}")
        A.label(done)
        A(f"s_mov_b64 exec, s[{S_T2}:{S_T3}]")

    def wo_reads(self, o, kk, par):
        reg = [W_LO, W_LO, W_MID, VADDR][o]
        t = kk >> 1
        imm = [t * 8192, 32768 + t * 8192, t * 8192, KSLOT[t] - RBASE][o] + (kk & 1) * 4096
        return [f"ds_read_b64_tr_b16 {ar(WOF(par, nb) + 2*jh, 2)}, v{reg+nb} offset:{imm + jh*2048}" for nb in range(4) for jh in range(2)]

    def oproj_steps(self, steps, pre=None, fill=None, first_c0=()):
        A = self.A
        pre = pre or {}; fill = fill or {}
        for si, (o, kk, blks) in enumerate(steps):
            par = (self.opar + si) & 3
            mf = []
            for nb in range(4):
                for blk in blks:
                    a = ACC(blk, nb)
                    b = vr(OFR(blk, kk), 4) if o == 0 else ar(PFR(o, blk, kk), 4)
                    c = "0" if (si, blk) in first_c0 else vr(a, 16)
                    mf.append(f"{MFMA} {vr(a,16)}, {ar(WOF(par, nb),4)}, {b}, {c}")
            nxt = []
            if si + 2 < len(steps): nxt = self.wo_reads(steps[si+2][0], steps[si+2][1], (par + 2) & 3)
            elif self.onext and si + 2 - len(steps) < len(self.onext):
                o2, k2 = self.onext[si + 2 - len(steps)]; nxt = self.wo_reads(o2, k2, (par + 2) & 3)
            gaps = [[] for _ in mf]
            for i, r in enumerate(nxt): gaps[i * len(mf) // 8].append(r)
            f = fill.get(si, [])
            for i, x in enumerate(f): gaps[min(len(mf) - 1, i * len(mf) // max(1, len(f)))].append(x)
            for x in pre.get(si, []): A(x)
            has_next = (si + 1 < len(steps)) or bool(self.onext)
            A("s_waitcnt lgkmcnt(8)" if has_next else "s_waitcnt lgkmcnt(0)")
            self.weave(mf, gaps)
        self.opar = (self.opar + len(steps)) & 3

    def flag_store(self, base):
        A = self.A
        A(f"s_lshl_b32 s{S_T0}, s2, 7", f"s_add_u32 s{S_T0}, s{S_T0}, {base}", f"v_mov_b32 v{V_EP+6}, s{S_T0}")
        A(f"s_mov_b64 s[{S_T2}:{S_T3}], exec", "s_mov_b64 exec, 1")
        A(f"buffer_store_dwordx2 v[{V_EP}:{V_EP+1}], v{V_EP+6}, s[{SRD_WS}:{SRD_WS+3}], 0 offen sc1")
        A(f"s_mov_b64 exec, s[{S_T2}:{S_T3}]")

    def stores(self, base_sgpr, blk, first_reg):
        out = []
        for half in range(2):
            out.append(f"s_add_u32 s{S_T1}, s{base_sgpr}, {(blk*8 + half*4)*1024}")
            for q in range(4):
                out.append(f"buffer_store_dwordx4 {vr(first_reg + (half*4+q)*4, 4)}, v{VL16}, s[{SRD_WS}:{SRD_WS+3}], s{S_T1} offen offset:{q*1024} sc1")
        return out

    def tail_setup(self):
        A = self.A
        S_PUB = 76; S_PART = 77; PB = [78, 79, 80]
        A(f"s_mov_b32 s{SRD_WS}, s{S_WS}", f"s_mov_b32 s{SRD_WS+1}, s{S_WS+1}", f"s_mov_b32 s{SRD_WS+2}, 0x10000000", f"s_mov_b32 s{SRD_WS+3}, 0x20000")
        A(f"s_mov_b32 s{SRD_OUT}, s{S_OUT}", f"s_mov_b32 s{SRD_OUT+1}, s{S_OUT+1}", f"s_mov_b32 s{SRD_OUT+2}, {8*224*512*2}", f"s_mov_b32 s{SRD_OUT+3}, 0x20000")
        A(f"v_lshlrev_b32 v{VL16}, 4, v{V_LANE}", f"s_lshl_b32 s{S_T0}, s{S_WAVE}, 14", f"v_add_u32 v{VL16}, s{S_T0}, v{VL16}")
        for nb in range(4):
            A(f"v_subrev_u32 v{W_LO+nb}, {RBASE}, v{VADDR+nb}")
            A(f"v_add_u32 v{W_MID+nb}, 65536, v{W_LO+nb}")
        A(f"s_lshl_b32 s{S_PUB}, s2, 16", f"s_add_u32 s{S_PART}, s{S_PUB}, {PART:#x}", f"s_add_u32 s{S_PUB}, s{S_PUB}, {OFRAG:#x}")
        for o in range(1, 4):
            A(f"s_add_u32 s{S_T0}, s{S_C}, {o}", f"s_and_b32 s{S_T0}, s{S_T0}, 3", f"s_lshl_b32 s{S_T0}, s{S_T0}, 3", f"s_andn2_b32 s{S_T1}, s2, 24", f"s_or_b32 s{S_T0}, s{S_T0}, s{S_T1}")
            A(f"s_lshl_b32 s{S_T0}, s{S_T0}, 16", f"s_add_u32 s{PB[o-1]}, s{S_T0}, {OFRAG:#x}")

    def slow_path(self, lw):
        A = self.A
        nblk = 1 if lw else 2
        tag = "LW" if lw else "CW"
        KA = 214; VA = 222 - 0
        VA = 176; M = [180, 181]; T = [182, 183, 184, 185]
        A.label(f"L_slow_{tag}")
        A(f"s_mov_b32 s{S_T0}, {VSLOT[0]}")
        for w in range(1, 4): A(f"s_cmp_eq_u32 s{S_WAVE}, {w}", f"s_cselect_b32 s{S_T0}, {VSLOT[w]}, s{S_T0}")
        A(f"s_sub_u32 s{S_T1}, s{S_T0}, {RBASE}")
        for c in range(8): A(f"v_add_u32 v{KA+c}, s{S_T1}, v{KADDR+c}")
        for d in range(4): A(f"v_add_u32 v{VA+d}, s{S_T1}, v{VADDR+d}")
        for r in range(nblk * 64): A(f"v_mov_b32 v{r}, 0")
        for blk in range(nblk): A(f"v_mov_b32 v{[V_LA, V_LB][blk]}, 0", f"v_mov_b32 v{M[blk]}, 0xff800000")
        A(f"s_mov_b32 s{S_KOFF}, 0")
        lp = f"L_slowl_{tag}"
        A.label(lp)
        def dma(kind):
            srd = SRD_K if kind == "K" else SRD_V
            for g in range(2):
                A(f"s_add_u32 m0, s{S_T0}, {g*4096}", f"s_add_u32 s{S_T1}, s{S_KOFF}, {g*4096}")
                for j in range(4):
                    A(f"buffer_load_dwordx4 v{VOFFK + j if kind == 'K' else VOFFV}, s[{srd}:{srd+3}], s{S_T1} offen offset:{j*1024} lds")
            A("s_waitcnt vmcnt(0)")
        dma("K")
        for c in range(8): A(f"ds_read_b128 {ar(KF(c),4)}, v{KA+c}")
        A("s_waitcnt lgkmcnt(0)")
        dma("V")
        for ks in range(2):
            for db in range(4):
                for jh in range(2): A(f"ds_read_b64_tr_b16 {ar(VF(db,ks)+2*jh,2)}, v{VA+db} offset:{ks*4096 + jh*2048}")
        for blk in range(nblk):
            S = SA if blk == 0 else SB; P = PA if blk == 0 else PB; Lr = [V_LA, V_LB][blk]
            for c in range(8): A(f"{MFMA} {vr(S,16)}, {ar(KF(c),4)}, {ar(QF(blk,c),4)}, {'0' if c == 0 else vr(S,16)}")
            A("s_nop 15", "s_nop 7")
            A(f"v_max3_f32 v{T[0]}, v{S}, v{S+1}, v{S+2}")
            for i in range(3, 15, 2): A(f"v_max3_f32 v{T[0]}, v{T[0]}, v{S+i}, v{S+i+1}")
            A(f"v_max_f32 v{T[0]}, v{T[0]}, v{S+15}", f"v_mov_b32 v{T[1]}, v{T[0]}", "s_nop 1", f"v_permlane32_swap_b32 v{T[0]}, v{T[1]}")
            A(f"v_max_f32 v{T[0]}, v{T[0]}, v{T[1]}", f"v_max_f32 v{T[0]}, v{T[0]}, v{M[blk]}")
            A(f"v_sub_f32 v{T[1]}, v{M[blk]}, v{T[0]}", f"v_exp_f32 v{T[1]}, v{T[1]}", f"v_mov_b32 v{M[blk]}, v{T[0]}")
            for i in range(16): A(f"v_sub_f32 v{S+i}, v{S+i}, v{T[0]}")
            for i in range(16): A(f"v_exp_f32 v{S+i}, v{S+i}")
            A(f"v_mul_f32 v{Lr}, v{Lr}, v{T[1]}")
            for i in range(16): A(f"v_add_f32 v{Lr}, v{Lr}, v{S+i}")
            for p in range(8): A(f"v_cvt_pk_bf16_f32 v{P+p}, v{S+2*p}, v{S+2*p+1}")
            for r in range(blk * 64, blk * 64 + 64): A(f"v_mul_f32 v{r}, v{r}, v{T[1]}")
        A("s_waitcnt lgkmcnt(0)")
        for blk in range(nblk):
            P = PA if blk == 0 else PB
            for ks in range(2):
                for db in range(4): A(f"{MFMA} {vr(ACC(blk,db),16)}, {ar(VF(db,ks),4)}, {vr(P+4*ks,4)}, {vr(ACC(blk,db),16)}")
        A("s_nop 15", "s_nop 7")
        A(f"s_add_u32 s{S_KOFF}, s{S_KOFF}, 8192", f"s_cmp_lt_u32 s{S_KOFF}, 0x40000", f"s_cbranch_scc1 {lp}")
        self.l_combine(nblk)
        A(f"s_branch L_resume_{tag}")

    def tail(self, lw):
        A = self.A
        nblk = 1 if lw else 2
        blks = list(range(nblk))
        S_PUB = 76; S_PART = 77; PB = [78, 79, 80]
        tag = "LW" if lw else "CW"
        self.l_combine(nblk)
        A(f"s_mov_b32 s{S_T0}, 0x2b800000", f"s_mov_b32 s{S_T1}, 0x53800000")
        A(f"v_cmp_nle_f32 vcc, s{S_T0}, v{V_LA}", f"v_cmp_nge_f32 s[{S_T2}:{S_T3}], s{S_T1}, v{V_LA}")
        A("s_nop 1", f"s_or_b64 s[{S_T2}:{S_T3}], s[{S_T2}:{S_T3}], vcc")
        if nblk == 2:
            A(f"v_cmp_nle_f32 vcc, s{S_T0}, v{V_LB}", "s_nop 1", f"s_or_b64 s[{S_T2}:{S_T3}], s[{S_T2}:{S_T3}], vcc")
            A(f"v_cmp_nge_f32 vcc, s{S_T1}, v{V_LB}", "s_nop 1", f"s_or_b64 s[{S_T2}:{S_T3}], s[{S_T2}:{S_T3}], vcc")
        if "forceslow" in self.dbg: A(f"s_mov_b64 s[{S_T2}:{S_T3}], -1")
        A(f"s_cmp_lg_u64 s[{S_T2}:{S_T3}], 0", f"s_cbranch_scc1 L_slow_{tag}")
        A.label(f"L_resume_{tag}")
        self.tstamp("T0")
        self.rstamp(6)
        for blk in blks:
            for x in self.norm_block(blk): A(x)
            for x in self.stores(S_PUB, blk, OFR(blk, 0)): A(x)
        self.tstamp("st1")
        A(f"s_waitcnt vmcnt({8*nblk})", "s_barrier")
        for r in self.wo_reads(0, 0, 0) + self.wo_reads(0, 1, 1): A(r)
        self.tstamp("bar0")
        self.stamp(10)
        if lw:
            lp = self.lab("ep"); dn = self.lab("epd")
            A(f"s_mov_b32 s{S_CNT}, 0")
            A.label(lp)
            A(f"v_readfirstlane_b32 s{S_EP}, v{V_EP}", f"v_readfirstlane_b32 s{S_EP+1}, v{V_EP+1}")
            A("s_nop 3", f"s_or_b32 s{S_T0}, s{S_EP}, s{S_EP+1}", f"s_cbranch_scc1 {dn}")
            A(f"s_add_u32 s{S_CNT}, s{S_CNT}, 1", f"s_cmp_gt_u32 s{S_CNT}, 0x40000", f"s_cbranch_scc1 {dn}")
            A(f"global_load_dwordx2 v[{V_EP}:{V_EP+1}], v{V_EP+6}, s[{S_DBG}:{S_DBG+1}] sc1", "s_waitcnt vmcnt(0)", f"s_branch {lp}")
            A.label(dn)
        self.opar = 0
        self.onext = [(0, 4), (0, 5)]
        self.oproj_steps([(0, kk, blks) for kk in range(4)], first_c0={(0, b) for b in blks})
        A(f"s_waitcnt vmcnt({8*(nblk-1)})", "s_barrier")
        def warm(blk):
            out = []
            if "warm" not in self.dbg: return out
            for half in range(2):
                out.append(f"s_add_u32 s{S_T1}, s{S_PUB}, {(blk*8 + half*4)*1024}")
                for q in range(4):
                    out.append(f"buffer_load_dwordx4 {ar(PFR(3, blk, half*4+q),4)}, v{VL16}, s[{SRD_WS}:{SRD_WS+3}], s{S_T1} offen offset:{q*1024} sc1")
            return out
        if lw: self.flag_store(FLAG1)
        self.onext = [(1, 0), (1, 1)]
        self.oproj_steps([(0, kk, blks) for kk in range(4, 8)], fill={0: warm(0)})
        self.tstamp("own")
        if not lw: A("s_waitcnt vmcnt(8)" if "warm" in self.dbg else "s_waitcnt vmcnt(0)")
        A("s_barrier")
        if not lw:
            for x in warm(1): A(x)
        self.tstamp("ack1")
        self.rstamp(7)
        def pflags(base):
            A(f"v_add_u32 v{V_EP+6}, 1, v{V_LANE}", f"v_lshlrev_b32 v{V_EP+6}, 3, v{V_EP+6}", f"v_xor_b32 v{V_EP+6}, s2, v{V_EP+6}", f"v_lshlrev_b32 v{V_EP+6}, 7, v{V_EP+6}")
            if base: A(f"v_add_u32 v{V_EP+6}, {base}, v{V_EP+6}")
        if lw:
            self.flag_store(FLAG1B)
            pflags(FLAG1)
            self.poll(3, V_EP + 6)
        A("s_barrier")
        self.tstamp("poll1")
        self.stamp(11)
        def group(o, blk):
            out = []
            for half in range(2):
                out.append(f"s_add_u32 s{S_T1}, s{PB[o-1]}, {(blk*8 + half*4)*1024}")
                for q in range(4):
                    out.append(f"buffer_load_dwordx4 {ar(PFR(o, blk, half*4+q),4)}, v{VL16}, s[{SRD_WS}:{SRD_WS+3}], s{S_T1} offen offset:{q*1024} sc1")
            return out
        for o in range(1, 4):
            for x in group(o, 0): A(x)
        stepsA = [(o, kk, [0]) for o in range(1, 4) for kk in range(8)]
        if lw:
            pflags(FLAG1B)
            self.poll(3, V_EP + 6)
            A("s_barrier")
            self.onext = None
            self.oproj_steps(stepsA, pre={0: ["s_waitcnt vmcnt(0)"]})
        else:
            g1 = group(1, 1) + group(2, 1) + group(3, 1)
            fill = {8: g1[:10], 9: g1[10:20], 10: g1[20:]}
            pre = {0: ["s_waitcnt vmcnt(16)"], 8: ["s_barrier", "s_waitcnt vmcnt(8)"], 16: ["s_waitcnt vmcnt(24)"]}
            self.onext = [(1, 0), (1, 1)]
            self.oproj_steps(stepsA, pre=pre, fill=fill)
        self.tstamp("phA")
        def pack(blk):
            out = []
            for nb in range(4):
                a = ACC(blk, nb)
                for u in range(2):
                    d = 128 + (blk * 8 + nb * 2 + u) * 4
                    for pj in range(4): out.append(f"v_cvt_pk_bf16_f32 v{d+pj}, v{a+8*u+2*pj}, v{a+8*u+2*pj+1}")
            return out
        if nblk == 2:
            stepsB = [(o, kk, [1]) for o in range(1, 4) for kk in range(8)]
            pk = pack(0); st = self.stores(S_PART, 0, 128)
            fill = {}
            for i in range(4): fill[1 + i] = pk[8*i:8*i+8]
            fill[5] = st[:5]; fill[6] = st[5:]
            preB = {0: ["s_waitcnt vmcnt(16)"], 8: ["s_waitcnt vmcnt(16)"], 16: ["s_waitcnt vmcnt(8)"]}
            self.onext = None
            self.oproj_steps(stepsB, pre=preB, fill=fill)
            A("s_nop 7", "s_nop 7")
            for x in pack(1): A(x)
            for x in self.stores(S_PART, 1, 128 + 32): A(x)
        else:
            A("s_nop 7", "s_nop 7")
            for x in pack(0): A(x)
            for x in self.stores(S_PART, 0, 128): A(x)
        self.stamp(7)
        self.tstamp("phB")
        A(f"s_andn2_b32 s{S_T0}, s2, 7", f"s_lshl_b32 s{S_T0}, s{S_T0}, 16", f"s_lshl_b32 s{S_T1}, s{S_J}, 13", f"s_add_u32 s{S_T0}, s{S_T0}, s{S_T1}")
        A(f"s_lshl_b32 s{S_T1}, s{S_WAVE}, 11", f"s_add_u32 s{S_T0}, s{S_T0}, s{S_T1}", f"s_add_u32 s{S_PUB}, s{S_T0}, {PART:#x}")
        VO = W_LO; VL = W_LO + 1
        A(f"v_and_b32 v{VO}, 31, v{V_LANE}", f"v_lshlrev_b32 v{VO}, 10, v{VO}", f"v_lshrrev_b32 v{VL}, 5, v{V_LANE}", f"v_lshl_add_u32 v{VO}, v{VL}, 4, v{VO}")
        A(f"v_lshlrev_b32 v{VL}, 4, v{V_LANE}")
        A(f"s_mul_i32 s{S_PART}, s{S_B}, {224*1024}", f"s_lshl_b32 s{S_T1}, s{S_J}, 15", f"s_add_u32 s{S_PART}, s{S_PART}, s{S_T1}")
        A(f"s_lshl_b32 s{S_T1}, s{S_C}, 8", f"s_add_u32 s{S_PART}, s{S_PART}, s{S_T1}", f"s_lshl_b32 s{S_T1}, s{S_WAVE}, 6", f"s_add_u32 s{S_PART}, s{S_PART}, s{S_T1}")
        A("s_mov_b32 s78, 0x3f80", "s_mov_b32 s79, 0x3f800000")
        A("s_waitcnt vmcnt(0)", "s_barrier")
        self.tstamp("ack2")
        if lw:
            self.flag_store(FLAG2)
        A(f"s_cmp_eq_u32 s{S_J}, 7", f"s_cbranch_scc1 L_fin_{tag}")
        if lw:
            A(f"s_andn2_b32 s{S_T0}, s2, 7", f"v_add_u32 v{V_EP+6}, s{S_T0}, v{V_LANE}", f"v_lshlrev_b32 v{V_EP+6}, 7, v{V_EP+6}", f"v_add_u32 v{V_EP+6}, {FLAG2}, v{V_EP+6}")
            self.poll(8, V_EP + 6)
        A("s_barrier")
        self.tstamp("poll2")
        for u in range(2):
            for sp in range(8):
                d = (u * 8 + sp) * 4
                A(f"s_add_u32 s{S_T1}, s{S_PUB}, {sp*65536 + u*1024}")
                A(f"buffer_load_dwordx4 {vr(d,4)}, v{VL}, s[{SRD_WS}:{SRD_WS+3}], s{S_T1} offen sc1")
        if "tst2" in self.dbg:
            A("s_waitcnt vmcnt(0)"); self.tstamp("ld2")
        for u in range(2):
            lo = 128 + u * 8; hi = lo + 4
            for sp in range(8):
                d = (u * 8 + sp) * 4
                if sp in (0, 4): A(f"s_waitcnt vmcnt({(2 - u) * 8 - sp - 4 + u})")
                for q in range(4):
                    if "nodot" in self.dbg:
                        if sp == 0: A(f"v_lshlrev_b32 v{lo+q}, 16, v{d+q}", f"v_and_b32 v{hi+q}, 0xffff0000, v{d+q}")
                        else: A(f"v_lshlrev_b32 v{160+q}, 16, v{d+q}", f"v_and_b32 v{164+q}, 0xffff0000, v{d+q}", f"v_add_f32 v{lo+q}, v{lo+q}, v{160+q}", f"v_add_f32 v{hi+q}, v{hi+q}, v{164+q}")
                    else:
                        A(f"v_dot2_f32_bf16 v{lo+q}, v{d+q}, s78, {'0' if sp == 0 else f'v{lo+q}'}", f"v_dot2_f32_bf16 v{hi+q}, v{d+q}, s79, {'0' if sp == 0 else f'v{hi+q}'}")
            r = 168 + u * 4
            for q in range(4): A(f"v_cvt_pk_bf16_f32 v{r+q}, v{lo+q}, v{hi+q}")
            A("s_nop 1")
            A(f"v_permlane32_swap_b32 v{r}, v{r+2}", f"v_permlane32_swap_b32 v{r+1}, v{r+3}")
            A(f"s_add_u32 s{S_T1}, s{S_PART}, {u*32}")
            A(f"buffer_store_dwordx4 {vr(r,4)}, v{VO}, s[{SRD_OUT}:{SRD_OUT+3}], s{S_T1} offen")
        A.label(f"L_fin_{tag}")
        if self.timing: A("s_waitcnt vmcnt(0)")

    def path(self, lw):
        A = self.A
        nblk = 1 if lw else 2
        self.lock = False
        if lw:
            A.label("L_LW")
            self.srds_rest()
            if self.stage >= 3:
                lb = self.lab("noep")
                A("s_cmp_lg_u32 s2, 0", f"s_cbranch_scc1 {lb}")
                A("s_memrealtime s[100:101]", "s_waitcnt lgkmcnt(0)", "s_or_b32 s100, s100, 1")
                A(f"v_mov_b32 v{V_EP}, s100", f"v_mov_b32 v{V_EP+1}, s101", f"v_mov_b32 v{V_EP+6}, 0")
                A(f"s_mov_b64 s[{S_T2}:{S_T3}], exec", "s_mov_b64 exec, 1")
                A(f"global_store_dwordx2 v{V_EP+6}, v[{V_EP}:{V_EP+1}], s[{S_DBG}:{S_DBG+1}] sc1")
                A(f"s_mov_b64 exec, s[{S_T2}:{S_T3}]")
                A.label(lb)
            self.addr_regs()
        else:
            self.q_slots_post()
            A(f"s_mov_b32 s{S_KC}, s{S_ROT}")
            self.pstamp(2)
            for g in self.q_dma(0, self.QSTEP[0]): A(*g)
            self.pstamp(3)
            self.srds_rest()
            self.addr_regs()
            self.pstamp(4)
            for g in self.q_dma(1, self.QSTEP[1]): A(*g)
            self.pstamp(5)
        A(f"s_add_u32 s{S_T0}, s{S_C}, s{S_WAVE}", f"s_and_b32 s{S_T0}, s{S_T0}, 3", f"s_lshl_b32 s{S_WOOFF}, s{S_T0}, 17")
        A(f"s_lshl_b32 s{S_WOLDS}, s{S_WAVE}, 15")
        A(f"s_mov_b32 s{S_KOFF}, {4*8192}", f"s_mov_b32 s{S_VOFF}, {3*8192}")
        self.stamp(1)
        if not lw: A("s_waitcnt vmcnt(12)" if "q0" not in self.dbg else "s_waitcnt vmcnt(0)")
        self.pstamp(6)
        A("s_barrier")
        self.pstamp(7)
        for r in self.q_reads(0, 0, nblk): A(r)
        self.stamp(2)
        for i in range(7):
            self.q_iter(i, nblk, lw)
            if "qst" in self.dbg and i in (0, 1, 2, 4): self.stamp({0: 3, 1: 4, 2: 5, 4: 6}[i])
        self.q_last(nblk, lw)
        self.stamp(3 if "qst" not in self.dbg else 7)
        self.lock = True
        if self.stage == 1:
            self.dump_frags(nblk, lambda b, c: ar(QF(b, c), 4)); A("s_branch L_end"); return
        self.attention(lw)
        self.stamp(5)
        if self.stage == 2:
            A("s_nop 7", "s_nop 7")
            self.normalize(nblk)
            self.dump_frags(nblk, lambda b, c: vr(OFR(b, c), 4))
            self.stamp(6); self.stamp(7)
            self.dump_stamps()
            A("s_branch L_end"); return
        self.tail(lw)
        self.tstamp("end")
        self.stamp(12)
        self.dump_stamps()
        A("s_branch L_end")

    def build(self):
        A = self.A
        hdr = []
        hdr.append(open("standalone__gqa_block_cached__near_ridge.s.ref").read().split("; Override")[0].rstrip())
        hdr.append(f"; @launch grid=(256,1,1) block=(256,1,1) lds={LDS_BYTES}")
        hdr.append('.amdgcn_target "amdgcn-amd-amdhsa--gfx950"')
        hdr.append(f".text\n.globl {NAME}\n.p2align 8\n.type {NAME},@function\n{NAME}:")
        self.prologue()
        self.path(False)
        self.path(True)
        if self.stage >= 3:
            self.slow_path(False)
            self.slow_path(True)
        A.label("L_end")
        A("s_endpgm")
        A.L = check_hazards(A.L, fix=True)
        tail = f""".section .rodata,"a"
.p2align 6
.amdhsa_kernel {NAME}
  .amdhsa_next_free_vgpr 512
  .amdhsa_next_free_sgpr 102
  .amdhsa_accum_offset 256
  .amdhsa_group_segment_fixed_size 0
  .amdhsa_kernarg_size 64
  .amdhsa_user_sgpr_count 2
  .amdhsa_user_sgpr_kernarg_segment_ptr 1
  .amdhsa_system_sgpr_workgroup_id_x 1
.end_amdhsa_kernel
"""
        return "\n".join(hdr) + "\n" + A.text() + tail

if __name__ == "__main__":
    stage = int(sys.argv[1]) if len(sys.argv) > 1 else 3
    out = sys.argv[2] if len(sys.argv) > 2 else "k.s"
    timing = len(sys.argv) > 3 and sys.argv[3] == "t"
    dbg = sys.argv[4].split(",") if len(sys.argv) > 4 else ()
    open(out, "w").write(Gen(stage, timing, dbg).build())
```

```python
import sys, struct
sys.path.insert(0, "dev")
from asmlib import *

NAME = "standalone__gqa_block_cached__near_ridge_kernel"
XOFF = 0; WOFF = XOFF + 28672; QBUF = 45056
RBASE = 98304
KSLOT = [139264, 155648, 122880, 131072]
VSLOT = [147456, 98304, 106496, 114688]
WOREG = [0, 32768, 65536]
SCRATCH = VSLOT[1]
LDS_BYTES = 163840
FLAG1 = 0; FLAG1B = 0x10000; FLAG2 = 0x20000; OFRAG = 0x100000; PART = 0x1200000; STAMPS = 0x4000000
import os
HIGHWS = int(os.environ.get('HIGHWS', '0'), 0)
OFRAG += HIGHWS; PART += HIGHWS
try:
    XB_ += HIGHWS
except NameError:
    pass
SRD_X, SRD_WQ, SRD_K, SRD_V, SRD_WO = 4, 8, 12, 16, 20
S_OUT, S_DBG, S_WS = 24, 26, 28
S_WAVE, S_B, S_H, S_C, S_J, S_ROT, S_KC, S_CNT, S_T0, S_T1 = 30, 31, 32, 33, 34, 35, 36, 37, 38, 39
S_EP = 40
S_T2, S_T3 = 42, 43
KA0, KA1 = 44, 52
SLOT_SRD = [60, 64, 68, 72]
SRD_WS = 60; SRD_OUT = 64
SLOT_BASE = [76, 77, 78, 79]; SLOT_STRIDE = [80, 81, 82, 83]; SLOT_LDS = [84, 85, 86, 87]
S_KOFF, S_VOFF = 88, 89
S_WOOFF, S_WOLDS = 90, 91
S_TS = 92
V_LANE = 255
KADDR = 240; VADDR = 248
VOFFK = 228; VOFFV = 232; VOFFO = 233
V_LA, V_LB = 237, 238
V_T = [252, 253, 254, 239]
SA, SB = 128, 144
PA, PB = 160, 168
WADDR = 128; XADDR = 132; SLOTV = 136; RAWX = 152; RAWW = 156; XADDR2 = 160; WADDR2 = 164
V_ZERO = 192
V_EP = 196
VL16 = 204; W_LO = 205; W_MID = 209
def ACC(blk, db): return blk * 64 + db * 16
def WF(st, ks, db): return st * 64 + (ks * 4 + db) * 4
def XF(st, blk, ks): return 128 + st * 32 + (blk * 4 + ks) * 4
def QF(blk, c): return 128 + blk * 32 + c * 4
def KF(c): return 192 + c * 4
def VF(db, ks): return 224 + (ks * 4 + db) * 4
def OFR(blk, kk): return 128 + blk * 32 + kk * 4
def PFR(o, blk, kk): return (o - 1) * 64 + blk * 32 + kk * 4
def WOF(par, nb): return 192 + par * 16 + nb * 4
QSCALE = 0.08838834764831845 * 1.4426950408889634
def f2u(x): return struct.unpack("<I", struct.pack("<f", x))[0]
MFMA = "v_mfma_f32_32x32x16_bf16"

class Gen:
    def __init__(self, stage=3, timing=False, dbg=()):
        self.A = Asm(); self.stage = stage; self.timing = timing; self.dbg = set(dbg); self.uid = 0

    def lab(self, p):
        self.uid += 1; return f"L_{p}{self.uid}"

    def weave(self, mfmas, gaps, pre=None):
        A = self.A
        for i, (m, g) in enumerate(zip(mfmas, gaps)):
            if pre and i in pre:
                for x in pre[i]: A(x)
            if m: A(m)
            for x in g: A(x)

    def tstamp(self, name):
        order = {"tst": ["T0", "bar0", "st1", "own", "ack1", "poll1", "phA", "phB"], "tst2": ["T0", "phB", "ack2", "poll2", "ld2", "end", "x", "y"]}
        for k, lst in order.items():
            if k in self.dbg and self.timing and name in lst:
                self.A("s_memtime s[100:101]", "s_waitcnt lgkmcnt(0)", f"s_mov_b32 s{S_TS+lst.index(name)}, s100")

    def rstamp(self, slot):
        if "tst2" in self.dbg and self.timing:
            self.A("s_memrealtime s[100:101]", "s_waitcnt lgkmcnt(0)", f"s_mov_b32 s{S_TS+slot}, s100")

    def pstamp(self, idx):
        if "pro" in self.dbg and self.timing:
            self.A("s_memtime s[100:101]", "s_waitcnt lgkmcnt(0)", f"s_mov_b32 s{S_TS+idx}, s100")

    def stamp(self, idx):
        if "pro" in self.dbg and idx != 0: return
        if "tst" in self.dbg or "tst2" in self.dbg: return
        if "qst" in self.dbg and getattr(self, "lock", False): return
        if self.stage >= 3 and "qst" not in self.dbg:
            idx = {0: 0, 2: 1, 3: 2, 5: 3, 10: 4, 11: 5, 7: 6, 12: 7}.get(idx)
            if idx is None: return
        if self.timing:
            self.A("s_memtime s[100:101]", "s_waitcnt lgkmcnt(0)", f"s_mov_b32 s{S_TS+idx}, s100")

    def dump_stamps(self):
        if not self.timing: return
        A = self.A
        A("s_memrealtime s[100:101]", "s_waitcnt lgkmcnt(0)")
        A(f"s_lshl_b32 s{S_T0}, s2, 2", f"s_add_u32 s{S_T0}, s{S_T0}, s{S_WAVE}", f"s_lshl_b32 s{S_T0}, s{S_T0}, 6", f"s_add_u32 s{S_T0}, s{S_T0}, {STAMPS:#x}")
        A(f"v_mov_b32 v20, s{S_T0}")
        for i in range(8): A(f"v_mov_b32 v{4+i}, s{S_TS+i}")
        A(f"v_mov_b32 v12, s3", "v_mov_b32 v13, s100", "v_mov_b32 v14, 0", "v_mov_b32 v15, 0")
        A(f"v_cmp_eq_u32 vcc, 0, v{V_LANE}", "s_and_saveexec_b64 s[100:101], vcc")
        for i in range(3): A(f"global_store_dwordx4 v20, v[{4+4*i}:{7+4*i}], s[{S_WS}:{S_WS+1}] offset:{16*i}")
        A("s_waitcnt vmcnt(0)", "s_mov_b64 exec, s[100:101]")

    def prologue(self):
        A = self.A
        A("s_cmp_ge_u32 s2, 256", "s_cbranch_scc1 L_end")
        if "exit0" in self.dbg: A("s_endpgm")
        if self.timing:
            A("s_memrealtime s[100:101]", "s_waitcnt lgkmcnt(0)", "s_mov_b32 s3, s100")
            self.stamp(0)
        A(f"s_load_dwordx8 s[{KA0}:{KA0+7}], s[0:1], 0", f"s_load_dwordx8 s[{KA1}:{KA1+7}], s[0:1], 32")
        A("v_lshrrev_b32 v1, 6, v0", f"v_and_b32 v{V_LANE}, 63, v0")
        A(f"v_readfirstlane_b32 s{S_WAVE}, v1")
        A("s_nop 3")
        if "nocodepf" not in self.dbg:
            A(f"v_and_b32 v20, 15, v{V_LANE}", f"s_lshr_b32 s{S_T0}, s2, 3", f"s_lshl_b32 s{S_T0}, s{S_T0}, 4")
            A(f"s_cmp_lg_u32 s{S_WAVE}, 3", "s_cbranch_scc1 L_nopf")
            A("s_getpc_b64 s[100:101]")
            A.label("L_pc0")
            A(f"s_sub_u32 s100, s100, L_pc0-{NAME}", "s_subb_u32 s101, s101, 0")
            A(f"v_add_u32 v20, s{S_T0}, v20", "v_lshlrev_b32 v20, 7, v20")
            A(f"v_min_u32 v20, L_end-{NAME}, v20", "global_load_dword v21, v20, s[100:101]")
            A.label("L_nopf")
        A(f"s_and_b32 s{S_J}, s2, 7", f"s_lshr_b32 s{S_C}, s2, 3", f"s_and_b32 s{S_C}, s{S_C}, 3", f"s_lshr_b32 s{S_B}, s2, 5")
        A(f"s_lshl_b32 s{S_H}, s{S_J}, 2", f"s_add_u32 s{S_H}, s{S_H}, s{S_C}")
        A(f"s_lshl_b32 s{S_ROT}, s{S_C}, 1", f"s_add_u32 s{S_ROT}, s{S_ROT}, s{S_B}", f"s_and_b32 s{S_ROT}, s{S_ROT}, 7")
        L = V_LANE
        A(f"v_lshrrev_b32 v2, 4, v{L}", f"v_and_b32 v3, 15, v{L}", f"v_and_b32 v4, 31, v{L}", f"v_lshrrev_b32 v5, 5, v{L}")
        A("v_lshrrev_b32 v6, 2, v3", "v_and_b32 v7, 3, v3")
        A("v_lshlrev_b32 v8, 2, v2", "v_xor_b32 v8, v8, v3", "v_lshlrev_b32 v8, 4, v8")
        A(f"v_lshl_add_u32 v{RAWW}, v2, 13, v8")
        for j in range(1, 4): A(f"v_add_u32 v{RAWW+j}, {j*31744}, v{RAWW}")
        A(f"v_and_b32 v9, 7, v{L}", "v_xor_b32 v9, v9, v2", "v_lshlrev_b32 v9, 4, v9", f"v_lshrrev_b32 v10, 3, v{L}")
        A(f"v_lshl_add_u32 v{RAWX}, v10, 10, v9")
        A(f"v_xor_b32 v{RAWX+1}, 64, v{RAWX}", f"v_add_u32 v{RAWX+1}, 7168, v{RAWX+1}")
        A(f"v_add_u32 v{RAWX+2}, 14336, v{RAWX}")
        A(f"v_add_u32 v{RAWX+3}, 14336, v{RAWX+1}")
        self.q_slots_pre()
        A(f"s_mov_b32 s{SLOT_SRD[0]+3}, 0x20000")
        A("s_waitcnt lgkmcnt(0)")
        self.pstamp(1)
        x, k, v, wq, wo = KA0, KA0+2, KA0+4, KA0+6, KA1
        A(f"s_mul_i32 s{S_T0}, s{S_B}, 229376")
        A(f"s_add_u32 s{SRD_X}, s{x}, s{S_T0}", f"s_addc_u32 s{SRD_X+1}, s{x+1}, 0", f"s_mov_b32 s{SRD_X+2}, 229376", f"s_mov_b32 s{SRD_X+3}, 0x20000")
        A(f"s_lshl_b32 s{S_T0}, s{S_H}, 8")
        A(f"s_add_u32 s{SRD_WQ}, s{wq}, s{S_T0}", f"s_addc_u32 s{SRD_WQ+1}, s{wq+1}, 0", f"s_sub_u32 s{SRD_WQ+2}, 0x400000, s{S_T0}", f"s_mov_b32 s{SRD_WQ+3}, 0x20000")
        A(f"s_cmp_eq_u32 s{S_WAVE}, 3", "s_cbranch_scc1 L_LW")

    def srds_rest(self):
        A = self.A
        x, k, v, wq, wo = KA0, KA0+2, KA0+4, KA0+6, KA1
        A(f"s_lshl_b32 s{S_T0}, s{S_B}, 5", f"s_add_u32 s{S_T0}, s{S_T0}, s{S_H}", f"s_lshl_b32 s{S_T0}, s{S_T0}, 18")
        A(f"s_add_u32 s{SRD_K}, s{k}, s{S_T0}", f"s_addc_u32 s{SRD_K+1}, s{k+1}, 0", f"s_mov_b32 s{SRD_K+2}, 0x40000", f"s_mov_b32 s{SRD_K+3}, 0x20000")
        A(f"s_add_u32 s{SRD_V}, s{v}, s{S_T0}", f"s_addc_u32 s{SRD_V+1}, s{v+1}, 0", f"s_mov_b32 s{SRD_V+2}, 0x40000", f"s_mov_b32 s{SRD_V+3}, 0x20000")
        A(f"s_lshl_b32 s{S_T0}, s{S_J}, 19", f"s_lshl_b32 s{S_T1}, s{S_C}, 8", f"s_add_u32 s{S_T0}, s{S_T0}, s{S_T1}")
        A(f"s_add_u32 s{SRD_WO}, s{wo}, s{S_T0}", f"s_addc_u32 s{SRD_WO+1}, s{wo+1}, 0", f"s_sub_u32 s{SRD_WO+2}, 0x400000, s{S_T0}", f"s_mov_b32 s{SRD_WO+3}, 0x20000")
        A(f"s_mov_b64 s[{S_OUT}:{S_OUT+1}], s[{KA1+2}:{KA1+3}]", f"s_mov_b64 s[{S_DBG}:{S_DBG+1}], s[{KA1+4}:{KA1+5}]", f"s_mov_b64 s[{S_WS}:{S_WS+1}], s[{KA1+6}:{KA1+7}]")

    def addr_regs(self):
        A = self.A
        A(f"v_lshl_add_u32 v{VOFFV}, v2, 8, v8")
        A("v_xor_b32 v9, v3, v2", "v_lshlrev_b32 v9, 4, v9", f"v_lshl_add_u32 v{VOFFK}, v2, 8, v9")
        for j in range(1, 4): A(f"v_xor_b32 v{VOFFK+j}, {j<<6}, v{VOFFK}")
        A(f"v_lshl_add_u32 v{VOFFO}, v2, 10, v8")
        for j in range(1, 4): A(f"v_add_u32 v{VOFFO+j}, {j*3072}, v{VOFFO}")
        A("v_and_b32 v9, 15, v4", "v_xor_b32 v9, v9, v5", "v_lshlrev_b32 v9, 4, v9", "v_lshl_add_u32 v9, v4, 8, v9", f"v_add_u32 v{KADDR}, {RBASE}, v9")
        for c in range(1, 8): A(f"v_xor_b32 v{KADDR+c}, {c<<5}, v{KADDR}")
        A("v_and_b32 v10, 1, v2", "v_lshlrev_b32 v10, 1, v10", "v_lshlrev_b32 v11, 2, v6", "v_or_b32 v10, v10, v11")
        A("v_lshrrev_b32 v11, 1, v7", "v_or_b32 v11, v11, v10", "v_lshlrev_b32 v11, 4, v11")
        A("v_and_b32 v12, 1, v7", "v_lshl_add_u32 v11, v12, 3, v11")
        A("v_lshl_add_u32 v12, v5, 2, v6", "v_lshl_add_u32 v11, v12, 8, v11", f"v_add_u32 v{VADDR}, {RBASE}, v11")
        for d in range(1, 4): A(f"v_xor_b32 v{VADDR+d}, {d<<6}, v{VADDR}")
        A("v_and_b32 v11, 1, v7", "v_or_b32 v11, v11, v10", "v_lshlrev_b32 v11, 4, v11")
        A("v_lshrrev_b32 v12, 1, v7", "v_lshl_add_u32 v11, v12, 3, v11")
        A("v_lshl_add_u32 v12, v5, 3, v6", "v_lshl_add_u32 v11, v12, 8, v11", f"v_add_u32 v{WADDR}, {WOFF}, v11")
        for d in range(1, 4): A(f"v_xor_b32 v{WADDR+d}, {d<<6}, v{WADDR}")
        A("v_lshrrev_b32 v11, 1, v4", "v_and_b32 v11, 7, v11", "v_xor_b32 v11, v11, v5", "v_lshlrev_b32 v11, 4, v11", "v_lshl_add_u32 v11, v4, 7, v11")
        A(f"s_lshl_b32 s{S_T0}, s{S_WAVE}, 13", f"s_add_u32 s{S_T0}, s{S_T0}, {XOFF}", f"v_add_u32 v{XADDR}, s{S_T0}, v11")
        for ks in range(1, 4): A(f"v_xor_b32 v{XADDR+ks}, {ks<<5}, v{XADDR}")
        for r in range(4):
            A(f"v_add_u32 v{XADDR2+r}, {2*QBUF}, v{XADDR+r}", f"v_add_u32 v{WADDR2+r}, {2*QBUF}, v{WADDR+r}")
        for r in range(4): A(f"v_mov_b32 v{V_ZERO+r}, 0")
        A(f"v_mov_b32 v{V_LA}, 0", f"v_mov_b32 v{V_LB}, 0")

    def q_slots_pre(self):
        A = self.A
        XB, XL, WB, WL, EB, ES, EL = 76, 77, 78, 79, 80, 81, 82
        A(f"s_lshl_b32 s{XB}, s{S_WAVE}, 16", f"s_lshl_b32 s{XL}, s{S_WAVE}, 13", f"s_lshl_b32 s{WB}, s{S_WAVE}, 17")
        A(f"s_lshl_b32 s{WL}, s{S_WAVE}, 12", f"s_add_u32 s{WL}, s{WL}, {WOFF}")
        A(f"s_cmp_eq_u32 s{S_WAVE}, 0")
        A(f"s_cselect_b32 s{ES}, 7, 19")
        A(f"s_cselect_b64 s[{S_T2}:{S_T3}], -1, 0")
        A(f"s_cselect_b32 s{EB}, 6, 12", f"s_cselect_b32 s{EL}, 0, {WOFF + 3*4096 - 6*4096}")
        A(f"s_lshl_b32 s{EB}, s{EB}, 15", f"s_add_u32 s{EL}, s{EL}, {6*4096}")
        for j in range(4): A(f"v_cndmask_b32 v{SLOTV+j}, v{RAWW+j}, v{RAWX+j}, s[{S_T2}:{S_T3}]")

    def q_slots_post(self):
        A = self.A
        A(f"s_cmp_eq_u32 s{S_WAVE}, 0")
        for w in range(3): A(f"s_cselect_b32 s{SLOT_SRD[0]+w}, s{SRD_X+w}, s{SRD_WQ+w}")

    def q_dma(self, buf, step):
        XB, XL, WB, WL, EB, ES, EL = 76, 77, 78, 79, 80, 81, 82
        nt = " nt" if "qnt" in self.dbg else ""
        def loads(v, srd): return [f"buffer_load_dwordx4 v{v+j}, s[{srd}:{srd+3}], s{S_T0} offen offset:{j*1024}{nt} lds" for j in range(4)]
        out = []
        out.append([f"s_lshl_b32 s{S_T1}, s{S_KC}, 7", f"s_add_u32 m0, s{XL}, {buf*QBUF}", f"s_add_u32 s{S_T0}, s{XB}, s{S_T1}"] + loads(RAWX, SRD_X))
        out.append([f"s_add_u32 m0, s{XL}, {buf*QBUF + 4096}", f"s_add_u32 s{S_T0}, s{S_T0}, 32768"] + loads(RAWX, SRD_X))
        out.append([f"s_lshl_b32 s{S_T1}, s{S_KC}, 19", f"s_add_u32 m0, s{WL}, {buf*QBUF}", f"s_add_u32 s{S_T0}, s{WB}, s{S_T1}"] + loads(RAWW, SRD_WQ))
        lb = self.lab("qskip")
        out.append([f"s_cmp_eq_u32 s{S_WAVE}, 2", f"s_cbranch_scc1 {lb}", f"s_lshl_b32 s{S_T1}, s{S_KC}, s{ES}", f"s_add_u32 m0, s{EL}, {buf*QBUF}", f"s_add_u32 s{S_T0}, s{EB}, s{S_T1}"]
                   + loads(SLOTV, SLOT_SRD[0]) + [lb + ":"])
        out.append([f"s_add_u32 s{S_KC}, s{S_KC}, {step}", f"s_and_b32 s{S_KC}, s{S_KC}, 7"])
        return out

    def q_reads(self, st, buf, nblk):
        rd = []
        xa, wa, bo = (XADDR, WADDR, buf * QBUF) if buf < 2 else (XADDR2, WADDR2, 0)
        for ks in range(4):
            for blk in range(nblk):
                rd.append(f"ds_read_b128 {ar(XF(st,blk,ks),4)}, v{xa+ks} offset:{bo + blk*4096}")
            for db in range(4):
                for jh in range(2):
                    rd.append(f"ds_read_b64_tr_b16 {ar(WF(st,ks,db)+2*jh,2)}, v{wa+db} offset:{bo + ks*4096 + jh*1024}")
        return rd

    KVSEQ = [("K",0),("V",0),("K",1),("V",1),("K",2),("V",2),("K",3)]

    KVQ = {4: [("K",0)], 5: [("V",0), ("K",1)], 6: [("V",1), ("K",2)]}

    KVQ = {4: [("K",0)], 5: [("V",0), ("K",1)], 6: [("V",1), ("K",2)]}
    QSTEP = [2, 2, 2, 3, 2, 2, 2, 2]

    def spread_dma(self, groups, gaps, lo, hi):
        nload = sum(1 for g in groups for x in g if x.startswith("buffer_load"))
        pos = 0
        def at(): return min(hi, lo + pos * (hi - lo + 1) // max(1, nload))
        for g in groups:
            if any(x.startswith("s_cbranch") for x in g):
                gaps[at()] += g; pos += 4; continue
            pend = []
            for x in g:
                pend.append(x)
                if x.startswith("buffer_load"):
                    gaps[at()] += pend; pend = []; pos += 1
            if pend: gaps[at()] += pend

    def q_iter(self, i, nblk, lw):
        st = i & 1
        mf = []
        for ks in range(4):
            for db in range(4):
                for blk in range(nblk):
                    a = ACC(blk, db)
                    c = "0" if (i == 0 and ks == 0) else vr(a, 16)
                    mf.append(f"{MFMA} {vr(a,16)}, {ar(WF(st,ks,db),4)}, {ar(XF(st,blk,ks),4)}, {c}")
        n = len(mf)
        gaps = [[] for _ in range(n)]
        if not lw: gaps[0].append("s_waitcnt vmcnt(12)" if 1 <= i <= 5 else "s_waitcnt vmcnt(0)")
        gaps[0].append("s_barrier")
        rds = self.q_reads(st ^ 1, (i + 1) % 3, nblk)
        span = n - 4 if not lw else n - 2
        for idx, r in enumerate(rds): gaps[1 + idx * span // len(rds)].append(r)
        if not lw:
            if i == 0:
                self.spread_dma(self.q_dma(2, self.QSTEP[2]), gaps, 1, 15)
                self.spread_dma(self.q_dma(0, self.QSTEP[3]), gaps, 16, 30)
            elif i + 3 <= 7:
                self.spread_dma(self.q_dma(i % 3, self.QSTEP[i + 3]), gaps, 1, 29)
        else:
            dm = []
            for kind, t in self.KVQ.get(i, []): dm += self.tile_dma(kind, t % 4, f"{t*8192}")
            if dm:
                per = -(-len(dm) // (n - 2))
                for idx, x in enumerate(dm): gaps[1 + idx // per].append(x)
        self.A("s_waitcnt lgkmcnt(0)")
        self.weave(mf, gaps)

    def q_last(self, nblk, lw):
        A = self.A
        st = 1
        tiles = [(blk, db) for blk in range(nblk) for db in range(4)]
        mf = []
        for blk, db in tiles:
            a = ACC(blk, db)
            for ks in range(4):
                mf.append(f"{MFMA} {vr(a,16)}, {ar(WF(st,ks,db),4)}, {ar(XF(st,blk,ks),4)}, {vr(a,16)}")
        nt = len(tiles)
        conv = []
        for blk, db in tiles:
            a = ACC(blk, db); c = []
            for r in range(a, a + 16): c.append(f"v_mul_f32 v{r}, s{S_T2}, v{r}")
            for u in range(2):
                for pj in range(4):
                    r = a + 8*u + 2*pj
                    c.append(f"v_cvt_pk_bf16_f32 v{r}, v{r}, v{r+1}")
            for u in range(2):
                for pj in range(4):
                    r = a + 8*u + 2*pj
                    c.append(f"v_accvgpr_write_b32 a{QF(blk, 2*db+u)+pj}, v{r}")
            conv.append(c)
        zero = [f"{MFMA} {vr(ACC(blk,db),16)}, {vr(V_ZERO,4)}, {vr(V_ZERO,4)}, 0" for blk, db in tiles]
        A(f"s_mov_b32 s{S_T2}, {f2u(QSCALE):#x}", "s_waitcnt lgkmcnt(0)")
        stream = []
        late = []
        for ti in range(nt):
            for ins in conv[ti]:
                ms = 4 * ti + 3 + 3
                if "accvgpr_write" in ins and tiles[ti][0] == 1: late.append((4 * nt, ins, ti))
                else: stream.append((ms, ins, ti))
        stream += late
        slots = mf + zero
        gaps = [[] for _ in slots]
        pos = 0
        done_tile = [0] * nt
        remaining = [len(c) for c in conv]
        out_m = []; out_g = []
        si = 0
        for s in range(len(mf)):
            g = []
            while si < len(stream) and stream[si][0] <= s and len(g) < 5:
                g.append(stream[si][1]); remaining[stream[si][2]] -= 1; si += 1
            out_m.append(mf[s]); out_g.append(g)
        kb = len(mf) - 3
        if lw:
            dm = self.tile_dma("V", 2, f"{2*8192}") + self.tile_dma("K", 3, f"{3*8192}")
            for idx, x in enumerate(dm): out_g[idx * kb // len(dm)].insert(sum(1 for j in range(idx) if j * kb // len(dm) == idx * kb // len(dm)), x)
        bar = (["s_waitcnt vmcnt(48)" if "kv0" not in self.dbg else "s_waitcnt vmcnt(0)"] if lw else []) + ["s_barrier"]
        self.weave(out_m[:kb], out_g[:kb])
        A(out_m[kb]);
        for x in bar: A(x)
        for c in range(8): A(f"ds_read_b128 {ar(KF(c),4)}, v{KADDR+c} offset:{KSLOT[0]-RBASE}")
        for x in out_g[kb]: A(x)
        self.weave(out_m[kb+1:], out_g[kb+1:])
        zi = 0
        while si < len(stream) or zi < nt:
            if zi < nt and remaining[zi] == 0:
                A(zero[zi]); zi += 1
                continue
            cnt = 0
            while si < len(stream) and cnt < 6:
                A(stream[si][1]); remaining[stream[si][2]] -= 1; si += 1; cnt += 1
                if zi < nt and remaining[zi] == 0: break

    def dump_frags(self, nblk, fn):
        A = self.A
        A(f"s_lshl_b32 s{S_T0}, s2, 16", f"s_lshl_b32 s{S_T1}, s{S_WAVE}, 14", f"s_add_u32 s{S_T0}, s{S_T0}, s{S_T1}", f"s_add_u32 s{S_T0}, s{S_T0}, {OFRAG:#x}")
        A(f"v_lshlrev_b32 v{V_T[2]}, 4, v{V_LANE}", f"v_add_u32 v{V_T[2]}, s{S_T0}, v{V_T[2]}")
        for blk in range(nblk):
            for c in range(8):
                A(f"v_add_u32 v{V_T[3]}, {(blk*8+c)*1024}, v{V_T[2]}")
                A(f"global_store_dwordx4 v{V_T[3]}, {fn(blk,c)}, s[{S_WS}:{S_WS+1}]")
        A("s_waitcnt vmcnt(0)")

    def tile_dma(self, kind, slot, soff, nt=True):
        out = []
        if "nont" in self.dbg: nt = False
        base = (KSLOT if kind == "K" else VSLOT)[slot]
        srd = SRD_K if kind == "K" else SRD_V
        for g in range(2):
            out.append(f"s_add_u32 s{S_T1}, {soff}, {g*4096}" if not soff.isdigit() else f"s_mov_b32 s{S_T1}, {int(soff)+g*4096}")
            out.append(f"s_mov_b32 m0, {base + g*4096}")
            for j in range(4):
                vo = VOFFK + j if kind == "K" else VOFFV
                out.append(f"buffer_load_dwordx4 v{vo}, s[{srd}:{srd+3}], s{S_T1} offen offset:{j*1024}{' nt' if nt else ''} lds")
        res = []
        i = 0
        while i < len(out):
            res += [out[i+1], out[i]] + out[i+2:i+6]; i += 6
        return res

    def sm_items(self, blk, exp_gaps, lo=0, hi=16, extra_add=(), extra_cvt=(), skip=(15,)):
        S = SA if blk == 0 else SB; P = PA if blk == 0 else PB; Lr = V_LA if blk == 0 else V_LB
        out = {}
        def put(g, prio, ins):
            while g in skip: g += 1
            out.setdefault(g, []).append((prio, ins))
        for e in extra_add: put(0, 1, f"v_add_f32 v{Lr}, v{S+e}, v{Lr}")
        for p in extra_cvt: put(0, 2, f"v_cvt_pk_bf16_f32 v{P+p}, v{S+2*p}, v{S+2*p+1}")
        for i in range(lo, hi):
            g = exp_gaps[i - lo]
            put(g, 0, f"v_exp_f32 v{S+i}, v{S+i}")
            put(g + 1, 1, f"v_add_f32 v{Lr}, v{S+i}, v{Lr}")
            if i & 1:
                put(g + 1, 2, f"v_cvt_pk_bf16_f32 v{P+i//2}, v{S+i-1}, v{S+i}")
        return out

    def attn_iter(self, t, lw):
        A = self.A
        tm = t % 4
        do_qk = t + 1 <= 31; do_pv = t >= 0
        do_kr = t + 2 <= 31; do_vr = 0 <= t + 1 <= 31
        def qk(blk):
            S = SA if blk == 0 else SB
            return [f"{MFMA} {vr(S,16)}, {ar(KF(c),4)}, {ar(QF(blk,c),4)}, {'0' if c == 0 else vr(S,16)}" for c in range(8)] if do_qk else [None]*8
        def pv(blk):
            P = PA if blk == 0 else PB
            return [f"{MFMA} {vr(ACC(blk,db),16)}, {ar(VF(db,ks),4)}, {vr(P+4*ks,4)}, {vr(ACC(blk,db),16)}" for ks in range(2) for db in range(4)] if do_pv else [None]*8
        mf = qk(0) + pv(0) + (qk(1) + pv(1) if not lw else [None]*16)
        gaps = [[] for _ in range(33)]
        def merge(d):
            for g, lst in d.items():
                if g < 32: gaps[g] += lst
        BEXP = [28,29,30,31] + list(range(0,12))
        AEXP = [12,13,13,14] + list(range(16,28))
        if not lw:
            if t >= 0: merge(self.sm_items(1, BEXP[4:], lo=4, hi=16, extra_add=(3,), extra_cvt=(1,)))
            if do_qk:
                merge(self.sm_items(0, AEXP))
                merge(self.sm_items(1, BEXP[:4], lo=0, hi=4))
        else:
            if do_qk: merge(self.sm_items(0, AEXP))
        gl = [[ins for _, ins in sorted(g, key=lambda x: x[0])] for g in gaps]
        mem = [[] for _ in range(33)]
        kslot = (t + 2) % 4; vslot = (t + 1) % 4
        kr = [f"ds_read_b128 {ar(KF(c),4)}, v{KADDR+c} offset:{KSLOT[kslot]-RBASE}" for c in range(8)] if do_kr else []
        vrd = []
        if do_vr:
            for ks in range(2):
                for db in range(4):
                    for jh in range(2):
                        vrd.append(f"ds_read_b64_tr_b16 {ar(VF(db,ks)+2*jh,2)}, v{VADDR+db} offset:{VSLOT[vslot]-RBASE + ks*4096 + jh*2048}")
        if not lw:
            for c, r in enumerate(kr): mem[16 + c].append(r)
            for i, r in enumerate(vrd): mem[24 + i // 2].append(r)
        else:
            for c, r in enumerate(kr): mem[16 + c // 2].append(r)
            for i, r in enumerate(vrd): mem[20 + i // 4].append(r)
        bar = []
        if lw:
            w = ({28: 24, 29: 24, 30: 24} if self.stage >= 3 else {28: 24, 29: 8, 30: 0}).get(t, 32)
            if "kv0" in self.dbg: w = 0
            if t <= 30: bar.append(f"s_waitcnt vmcnt({w})")
        bar.append("s_barrier")
        if "dly" in self.dbg: bar += ["s_nop 15"] * 6
        if "kv16" in self.dbg and lw: bar = [x.replace("vmcnt(32)", "vmcnt(16)").replace("vmcnt(24)", "vmcnt(8)") for x in bar]
        mem[15] = bar
        if lw:
            dm = []
            kpart = self.tile_dma("K", (t + 1) % 4, f"s{S_KOFF}") + [f"s_add_u32 s{S_KOFF}, s{S_KOFF}, 8192"]
            vpart = self.tile_dma("V", t % 4, f"s{S_VOFF}") + [f"s_add_u32 s{S_VOFF}, s{S_VOFF}, 8192"]
            if self.inloop and tm == 3:
                lb = self.lab("nok")
                dm = [f"s_cmp_eq_u32 s{S_CNT}, 6", f"s_cbranch_scc1 {lb}"] + kpart + [lb + ":"] + vpart
            elif t <= 26: dm = kpart + vpart
            elif t == 28 and self.stage >= 3: dm = self.wo_tile_dma(3, 0) + self.wo_tile_dma(3, 1)
            elif t in (29, 30) and self.stage >= 3: dm = self.wo_tile_dma(3, t - 27)
            mem[16] = dm + mem[16]
        if (not lw) and self.stage >= 3 and (t == -1 or (tm == 0 and 0 <= t <= 24)):
            dm = self.wo_group_dma()
            for i, x in enumerate(dm): mem[1 + i // 3].append(x)
        if t == 28 and self.stage >= 3 and lw:
            A(f"v_mov_b32 v{V_EP+6}, 0", f"global_load_dwordx2 v[{V_EP}:{V_EP+1}], v{V_EP+6}, s[{S_DBG}:{S_DBG+1}] sc1")
        if do_qk: A("s_waitcnt lgkmcnt(15)" if t >= 0 else "s_waitcnt lgkmcnt(0)")
        for g in range(32):
            if g == 8 and do_pv: A("s_waitcnt lgkmcnt(0)")
            if mf[g]: A(mf[g])
            for x in mem[g]: A(x)
            for x in gl[g]: A(x)

    def wo_tile_dma(self, o, tile):
        out = []
        for g in range(2):
            out.append(f"s_mov_b32 m0, {KSLOT[tile] + g*4096}")
            out.append(f"s_add_u32 s{S_T1}, s{S_WOOFF}, {tile*32768 + g*16384}")
            for j in range(4):
                out.append(f"buffer_load_dwordx4 v{VOFFO+j}, s[{SRD_WO}:{SRD_WO+3}], s{S_T1} offen offset:{j*1024}{' nt' if 'wont' in self.dbg else ''} lds")
        return out

    def wo_group_dma(self):
        out = [f"s_mov_b32 m0, s{S_WOLDS}", f"s_add_u32 s{S_WOLDS}, s{S_WOLDS}, 4096"]
        for j in range(4):
            out.append(f"buffer_load_dwordx4 v{VOFFO+j}, s[{SRD_WO}:{SRD_WO+3}], s{S_WOOFF} offen offset:{j*1024}{' nt' if 'wont' in self.dbg else ''} lds")
        out.append(f"s_add_u32 s{S_WOOFF}, s{S_WOOFF}, 16384")
        return out

    def attention(self, lw):
        A = self.A
        tag = "LW" if lw else "CW"
        if self.stage >= 3: self.tail_setup()
        self.inloop = False
        self.attn_iter(-1, lw)
        self.stamp(4)
        A(f"s_mov_b32 s{S_CNT}, 0")
        A(".p2align 4")
        A.label(f"L_attn_{tag}")
        start = len(A.L)
        self.inloop = True
        for t in range(4): self.attn_iter(t, lw)
        self.inloop = False
        body = A.L[start:]
        check_hazards(body + body, fix=False, name="attn loop " + tag)
        A(f"s_add_u32 s{S_CNT}, s{S_CNT}, 1", f"s_cmp_lt_u32 s{S_CNT}, 7", f"s_cbranch_scc1 L_attn_{tag}")
        for t in range(28, 32): self.attn_iter(t, lw)

    def l_combine(self, nblk):
        A = self.A
        R = [252, 254]
        for blk in range(nblk):
            Lr = V_LA if blk == 0 else V_LB
            A(f"v_mov_b32 v{R[blk]}, v{Lr}")
        A("s_nop 1")
        for blk in range(nblk):
            Lr = V_LA if blk == 0 else V_LB
            A(f"v_permlane32_swap_b32 v{Lr}, v{R[blk]}")
        for blk in range(nblk):
            Lr = V_LA if blk == 0 else V_LB
            A(f"v_add_f32 v{Lr}, v{Lr}, v{R[blk]}")
        for blk in range(nblk):
            Lr = V_LA if blk == 0 else V_LB
            A(f"v_rcp_f32 v{R[blk]}, v{Lr}")
        A("s_nop 0")

    def norm_block(self, blk):
        R = [252, 254][blk]
        out = []
        for db in range(4):
            a = ACC(blk, db)
            for r in range(a, a + 16, 2): out.append(f"v_pk_mul_f32 v[{r}:{r+1}], v[{r}:{r+1}], v[{R}:{R+1}] op_sel_hi:[1,0]")
            for u in range(2):
                for pj in range(4):
                    r = a + 8*u + 2*pj
                    out.append(f"v_cvt_pk_bf16_f32 v{OFR(blk, 2*db+u)+pj}, v{r}, v{r+1}")
        return out

    def normalize(self, nblk):
        self.l_combine(nblk)
        for blk in range(nblk):
            for x in self.norm_block(blk): self.A(x)

    def poll(self, nflags, vaddr_reg):
        A = self.A
        lp = self.lab("poll"); done = self.lab("polld")
        D = [214, 216, 218, 220]
        ld = lambda k: f"buffer_load_dwordx2 v[{D[k]}:{D[k]+1}], v{vaddr_reg}, s[{SRD_WS}:{SRD_WS+3}], 0 offen sc1"
        A(f"s_mov_b64 s[{S_T2}:{S_T3}], exec", f"s_mov_b64 exec, {(1 << nflags) - 1}")
        A(f"s_mov_b32 s{S_CNT}, 0")
        for k in range(3): A(ld(k), "s_nop 15", "s_nop 15")
        A.label(lp)
        for k in range(4):
            A(ld((k + 3) & 3))
            A("s_waitcnt vmcnt(3)")
            A(f"v_cmp_ne_u64 vcc, s[{S_EP}:{S_EP+1}], v[{D[k]}:{D[k]+1}]")
            A("s_nop 4")
            A(f"s_cbranch_vccz {done}")
        A(f"s_add_u32 s{S_CNT}, s{S_CNT}, 1", f"s_cmp_gt_u32 s{S_CNT}, 0x10000", f"s_cbranch_scc0 {lp}")
        A.label(done)
        A(f"s_mov_b64 exec, s[{S_T2}:{S_T3}]")

    def wo_reads(self, o, kk, par):
        reg = [W_LO, W_LO, W_MID, VADDR][o]
        t = kk >> 1
        imm = [t * 8192, 32768 + t * 8192, t * 8192, KSLOT[t] - RBASE][o] + (kk & 1) * 4096
        return [f"ds_read_b64_tr_b16 {ar(WOF(par, nb) + 2*jh, 2)}, v{reg+nb} offset:{imm + jh*2048}" for nb in range(4) for jh in range(2)]

    def oproj_steps(self, steps, pre=None, fill=None, first_c0=()):
        A = self.A
        pre = pre or {}; fill = fill or {}
        for si, (o, kk, blks) in enumerate(steps):
            par = (self.opar + si) & 3
            mf = []
            for nb in range(4):
                for blk in blks:
                    a = ACC(blk, nb)
                    b = vr(OFR(blk, kk), 4) if o == 0 else ar(PFR(o, blk, kk), 4)
                    c = "0" if (si, blk) in first_c0 else vr(a, 16)
                    mf.append(f"{MFMA} {vr(a,16)}, {ar(WOF(par, nb),4)}, {b}, {c}")
            nxt = []
            if si + 2 < len(steps): nxt = self.wo_reads(steps[si+2][0], steps[si+2][1], (par + 2) & 3)
            elif self.onext and si + 2 - len(steps) < len(self.onext):
                o2, k2 = self.onext[si + 2 - len(steps)]; nxt = self.wo_reads(o2, k2, (par + 2) & 3)
            gaps = [[] for _ in mf]
            for i, r in enumerate(nxt): gaps[i * len(mf) // 8].append(r)
            f = fill.get(si, [])
            for i, x in enumerate(f): gaps[min(len(mf) - 1, i * len(mf) // max(1, len(f)))].append(x)
            for x in pre.get(si, []): A(x)
            has_next = (si + 1 < len(steps)) or bool(self.onext)
            A("s_waitcnt lgkmcnt(8)" if has_next else "s_waitcnt lgkmcnt(0)")
            self.weave(mf, gaps)
        self.opar = (self.opar + len(steps)) & 3

    def flag_store(self, base):
        A = self.A
        A(f"s_lshl_b32 s{S_T0}, s2, 7", f"s_add_u32 s{S_T0}, s{S_T0}, {base}", f"v_mov_b32 v{V_EP+6}, s{S_T0}")
        A(f"s_mov_b64 s[{S_T2}:{S_T3}], exec", "s_mov_b64 exec, 1")
        A(f"buffer_store_dwordx2 v[{V_EP}:{V_EP+1}], v{V_EP+6}, s[{SRD_WS}:{SRD_WS+3}], 0 offen sc1")
        A(f"s_mov_b64 exec, s[{S_T2}:{S_T3}]")

    def stores(self, base_sgpr, blk, first_reg):
        out = []
        for half in range(2):
            out.append(f"s_add_u32 s{S_T1}, s{base_sgpr}, {(blk*8 + half*4)*1024}")
            for q in range(4):
                out.append(f"buffer_store_dwordx4 {vr(first_reg + (half*4+q)*4, 4)}, v{VL16}, s[{SRD_WS}:{SRD_WS+3}], s{S_T1} offen offset:{q*1024} sc1")
        return out

    def tail_setup(self):
        A = self.A
        S_PUB = 76; S_PART = 77; PB = [78, 79, 80]
        A(f"s_mov_b32 s{SRD_WS}, s{S_WS}", f"s_mov_b32 s{SRD_WS+1}, s{S_WS+1}", f"s_mov_b32 s{SRD_WS+2}, 0x10000000", f"s_mov_b32 s{SRD_WS+3}, 0x20000")
        A(f"s_mov_b32 s{SRD_OUT}, s{S_OUT}", f"s_mov_b32 s{SRD_OUT+1}, s{S_OUT+1}", f"s_mov_b32 s{SRD_OUT+2}, {8*224*512*2}", f"s_mov_b32 s{SRD_OUT+3}, 0x20000")
        A(f"v_lshlrev_b32 v{VL16}, 4, v{V_LANE}", f"s_lshl_b32 s{S_T0}, s{S_WAVE}, 14", f"v_add_u32 v{VL16}, s{S_T0}, v{VL16}")
        for nb in range(4):
            A(f"v_subrev_u32 v{W_LO+nb}, {RBASE}, v{VADDR+nb}")
            A(f"v_add_u32 v{W_MID+nb}, 65536, v{W_LO+nb}")
        A(f"s_lshl_b32 s{S_PUB}, s2, 16", f"s_add_u32 s{S_PART}, s{S_PUB}, {PART:#x}", f"s_add_u32 s{S_PUB}, s{S_PUB}, {OFRAG:#x}")
        for o in range(1, 4):
            A(f"s_add_u32 s{S_T0}, s{S_C}, {o}", f"s_and_b32 s{S_T0}, s{S_T0}, 3", f"s_lshl_b32 s{S_T0}, s{S_T0}, 3", f"s_andn2_b32 s{S_T1}, s2, 24", f"s_or_b32 s{S_T0}, s{S_T0}, s{S_T1}")
            A(f"s_lshl_b32 s{S_T0}, s{S_T0}, 16", f"s_add_u32 s{PB[o-1]}, s{S_T0}, {OFRAG:#x}")

    def slow_path(self, lw):
        A = self.A
        nblk = 1 if lw else 2
        tag = "LW" if lw else "CW"
        KA = 214; VA = 222 - 0
        VA = 176; M = [180, 181]; T = [182, 183, 184, 185]
        A.label(f"L_slow_{tag}")
        A(f"s_mov_b32 s{S_T0}, {VSLOT[0]}")
        for w in range(1, 4): A(f"s_cmp_eq_u32 s{S_WAVE}, {w}", f"s_cselect_b32 s{S_T0}, {VSLOT[w]}, s{S_T0}")
        A(f"s_sub_u32 s{S_T1}, s{S_T0}, {RBASE}")
        for c in range(8): A(f"v_add_u32 v{KA+c}, s{S_T1}, v{KADDR+c}")
        for d in range(4): A(f"v_add_u32 v{VA+d}, s{S_T1}, v{VADDR+d}")
        for r in range(nblk * 64): A(f"v_mov_b32 v{r}, 0")
        for blk in range(nblk): A(f"v_mov_b32 v{[V_LA, V_LB][blk]}, 0", f"v_mov_b32 v{M[blk]}, 0xff800000")
        A(f"s_mov_b32 s{S_KOFF}, 0")
        lp = f"L_slowl_{tag}"
        A.label(lp)
        def dma(kind):
            srd = SRD_K if kind == "K" else SRD_V
            for g in range(2):
                A(f"s_add_u32 m0, s{S_T0}, {g*4096}", f"s_add_u32 s{S_T1}, s{S_KOFF}, {g*4096}")
                for j in range(4):
                    A(f"buffer_load_dwordx4 v{VOFFK + j if kind == 'K' else VOFFV}, s[{srd}:{srd+3}], s{S_T1} offen offset:{j*1024} lds")
            A("s_waitcnt vmcnt(0)")
        dma("K")
        for c in range(8): A(f"ds_read_b128 {ar(KF(c),4)}, v{KA+c}")
        A("s_waitcnt lgkmcnt(0)")
        dma("V")
        for ks in range(2):
            for db in range(4):
                for jh in range(2): A(f"ds_read_b64_tr_b16 {ar(VF(db,ks)+2*jh,2)}, v{VA+db} offset:{ks*4096 + jh*2048}")
        for blk in range(nblk):
            S = SA if blk == 0 else SB; P = PA if blk == 0 else PB; Lr = [V_LA, V_LB][blk]
            for c in range(8): A(f"{MFMA} {vr(S,16)}, {ar(KF(c),4)}, {ar(QF(blk,c),4)}, {'0' if c == 0 else vr(S,16)}")
            A("s_nop 15", "s_nop 7")
            A(f"v_max3_f32 v{T[0]}, v{S}, v{S+1}, v{S+2}")
            for i in range(3, 15, 2): A(f"v_max3_f32 v{T[0]}, v{T[0]}, v{S+i}, v{S+i+1}")
            A(f"v_max_f32 v{T[0]}, v{T[0]}, v{S+15}", f"v_mov_b32 v{T[1]}, v{T[0]}", "s_nop 1", f"v_permlane32_swap_b32 v{T[0]}, v{T[1]}")
            A(f"v_max_f32 v{T[0]}, v{T[0]}, v{T[1]}", f"v_max_f32 v{T[0]}, v{T[0]}, v{M[blk]}")
            A(f"v_sub_f32 v{T[1]}, v{M[blk]}, v{T[0]}", f"v_exp_f32 v{T[1]}, v{T[1]}", f"v_mov_b32 v{M[blk]}, v{T[0]}")
            for i in range(16): A(f"v_sub_f32 v{S+i}, v{S+i}, v{T[0]}")
            for i in range(16): A(f"v_exp_f32 v{S+i}, v{S+i}")
            A(f"v_mul_f32 v{Lr}, v{Lr}, v{T[1]}")
            for i in range(16): A(f"v_add_f32 v{Lr}, v{Lr}, v{S+i}")
            for p in range(8): A(f"v_cvt_pk_bf16_f32 v{P+p}, v{S+2*p}, v{S+2*p+1}")
            for r in range(blk * 64, blk * 64 + 64): A(f"v_mul_f32 v{r}, v{r}, v{T[1]}")
        A("s_waitcnt lgkmcnt(0)")
        for blk in range(nblk):
            P = PA if blk == 0 else PB
            for ks in range(2):
                for db in range(4): A(f"{MFMA} {vr(ACC(blk,db),16)}, {ar(VF(db,ks),4)}, {vr(P+4*ks,4)}, {vr(ACC(blk,db),16)}")
        A("s_nop 15", "s_nop 7")
        A(f"s_add_u32 s{S_KOFF}, s{S_KOFF}, 8192", f"s_cmp_lt_u32 s{S_KOFF}, 0x40000", f"s_cbranch_scc1 {lp}")
        self.l_combine(nblk)
        A(f"s_branch L_resume_{tag}")

    def tail(self, lw):
        A = self.A
        nblk = 1 if lw else 2
        blks = list(range(nblk))
        S_PUB = 76; S_PART = 77; PB = [78, 79, 80]
        tag = "LW" if lw else "CW"
        self.l_combine(nblk)
        A(f"s_mov_b32 s{S_T0}, 0x2b800000", f"s_mov_b32 s{S_T1}, 0x53800000")
        A(f"v_cmp_nle_f32 vcc, s{S_T0}, v{V_LA}", f"v_cmp_nge_f32 s[{S_T2}:{S_T3}], s{S_T1}, v{V_LA}")
        A("s_nop 1", f"s_or_b64 s[{S_T2}:{S_T3}], s[{S_T2}:{S_T3}], vcc")
        if nblk == 2:
            A(f"v_cmp_nle_f32 vcc, s{S_T0}, v{V_LB}", "s_nop 1", f"s_or_b64 s[{S_T2}:{S_T3}], s[{S_T2}:{S_T3}], vcc")
            A(f"v_cmp_nge_f32 vcc, s{S_T1}, v{V_LB}", "s_nop 1", f"s_or_b64 s[{S_T2}:{S_T3}], s[{S_T2}:{S_T3}], vcc")
        if "forceslow" in self.dbg: A(f"s_mov_b64 s[{S_T2}:{S_T3}], -1")
        A(f"s_cmp_lg_u64 s[{S_T2}:{S_T3}], 0", f"s_cbranch_scc1 L_slow_{tag}")
        A.label(f"L_resume_{tag}")
        self.tstamp("T0")
        self.rstamp(6)
        for blk in blks:
            for x in self.norm_block(blk): A(x)
            for x in self.stores(S_PUB, blk, OFR(blk, 0)): A(x)
        self.tstamp("st1")
        A(f"s_waitcnt vmcnt({8*nblk})", "s_barrier")
        for r in self.wo_reads(0, 0, 0) + self.wo_reads(0, 1, 1): A(r)
        self.tstamp("bar0")
        self.stamp(10)
        if lw:
            lp = self.lab("ep"); dn = self.lab("epd")
            A(f"s_mov_b32 s{S_CNT}, 0")
            A.label(lp)
            A(f"v_readfirstlane_b32 s{S_EP}, v{V_EP}", f"v_readfirstlane_b32 s{S_EP+1}, v{V_EP+1}")
            A("s_nop 3", f"s_or_b32 s{S_T0}, s{S_EP}, s{S_EP+1}", f"s_cbranch_scc1 {dn}")
            A(f"s_add_u32 s{S_CNT}, s{S_CNT}, 1", f"s_cmp_gt_u32 s{S_CNT}, 0x40000", f"s_cbranch_scc1 {dn}")
            A(f"global_load_dwordx2 v[{V_EP}:{V_EP+1}], v{V_EP+6}, s[{S_DBG}:{S_DBG+1}] sc1", "s_waitcnt vmcnt(0)", f"s_branch {lp}")
            A.label(dn)
        self.opar = 0
        self.onext = [(0, 4), (0, 5)]
        self.oproj_steps([(0, kk, blks) for kk in range(4)], first_c0={(0, b) for b in blks})
        A(f"s_waitcnt vmcnt({8*(nblk-1)})", "s_barrier")
        def warm(blk):
            out = []
            if "warm" not in self.dbg: return out
            for half in range(2):
                out.append(f"s_add_u32 s{S_T1}, s{S_PUB}, {(blk*8 + half*4)*1024}")
                for q in range(4):
                    out.append(f"buffer_load_dwordx4 {ar(PFR(3, blk, half*4+q),4)}, v{VL16}, s[{SRD_WS}:{SRD_WS+3}], s{S_T1} offen offset:{q*1024} sc1")
            return out
        if lw: self.flag_store(FLAG1)
        self.onext = [(1, 0), (1, 1)]
        self.oproj_steps([(0, kk, blks) for kk in range(4, 8)], fill={0: warm(0)})
        self.tstamp("own")
        if not lw: A("s_waitcnt vmcnt(8)" if "warm" in self.dbg else "s_waitcnt vmcnt(0)")
        A("s_barrier")
        if not lw:
            for x in warm(1): A(x)
        self.tstamp("ack1")
        self.rstamp(7)
        def pflags(base):
            A(f"v_add_u32 v{V_EP+6}, 1, v{V_LANE}", f"v_lshlrev_b32 v{V_EP+6}, 3, v{V_EP+6}", f"v_xor_b32 v{V_EP+6}, s2, v{V_EP+6}", f"v_lshlrev_b32 v{V_EP+6}, 7, v{V_EP+6}")
            if base: A(f"v_add_u32 v{V_EP+6}, {base}, v{V_EP+6}")
        if lw:
            self.flag_store(FLAG1B)
            pflags(FLAG1)
            self.poll(3, V_EP + 6)
        A("s_barrier")
        self.tstamp("poll1")
        self.stamp(11)
        def group(o, blk):
            out = []
            for half in range(2):
                out.append(f"s_add_u32 s{S_T1}, s{PB[o-1]}, {(blk*8 + half*4)*1024}")
                for q in range(4):
                    out.append(f"buffer_load_dwordx4 {ar(PFR(o, blk, half*4+q),4)}, v{VL16}, s[{SRD_WS}:{SRD_WS+3}], s{S_T1} offen offset:{q*1024} sc1")
            return out
        for o in range(1, 4):
            for x in group(o, 0): A(x)
        stepsA = [(o, kk, [0]) for o in range(1, 4) for kk in range(8)]
        if lw:
            pflags(FLAG1B)
            self.poll(3, V_EP + 6)
            A("s_barrier")
            self.onext = None
            self.oproj_steps(stepsA, pre={0: ["s_waitcnt vmcnt(0)"]})
        else:
            g1 = group(1, 1) + group(2, 1) + group(3, 1)
            fill = {8: g1[:10], 9: g1[10:20], 10: g1[20:]}
            pre = {0: ["s_waitcnt vmcnt(16)"], 8: ["s_barrier", "s_waitcnt vmcnt(8)"], 16: ["s_waitcnt vmcnt(24)"]}
            self.onext = [(1, 0), (1, 1)]
            self.oproj_steps(stepsA, pre=pre, fill=fill)
        self.tstamp("phA")
        def pack(blk):
            out = []
            for nb in range(4):
                a = ACC(blk, nb)
                for u in range(2):
                    d = 128 + (blk * 8 + nb * 2 + u) * 4
                    for pj in range(4): out.append(f"v_cvt_pk_bf16_f32 v{d+pj}, v{a+8*u+2*pj}, v{a+8*u+2*pj+1}")
            return out
        if nblk == 2:
            stepsB = [(o, kk, [1]) for o in range(1, 4) for kk in range(8)]
            pk = pack(0); st = self.stores(S_PART, 0, 128)
            fill = {}
            for i in range(4): fill[1 + i] = pk[8*i:8*i+8]
            fill[5] = st[:5]; fill[6] = st[5:]
            preB = {0: ["s_waitcnt vmcnt(16)"], 8: ["s_waitcnt vmcnt(16)"], 16: ["s_waitcnt vmcnt(8)"]}
            self.onext = None
            self.oproj_steps(stepsB, pre=preB, fill=fill)
            A("s_nop 7", "s_nop 7")
            for x in pack(1): A(x)
            for x in self.stores(S_PART, 1, 128 + 32): A(x)
        else:
            A("s_nop 7", "s_nop 7")
            for x in pack(0): A(x)
            for x in self.stores(S_PART, 0, 128): A(x)
        self.stamp(7)
        self.tstamp("phB")
        A(f"s_andn2_b32 s{S_T0}, s2, 7", f"s_lshl_b32 s{S_T0}, s{S_T0}, 16", f"s_lshl_b32 s{S_T1}, s{S_J}, 13", f"s_add_u32 s{S_T0}, s{S_T0}, s{S_T1}")
        A(f"s_lshl_b32 s{S_T1}, s{S_WAVE}, 11", f"s_add_u32 s{S_T0}, s{S_T0}, s{S_T1}", f"s_add_u32 s{S_PUB}, s{S_T0}, {PART:#x}")
        VO = W_LO; VL = W_LO + 1
        A(f"v_and_b32 v{VO}, 31, v{V_LANE}", f"v_lshlrev_b32 v{VO}, 10, v{VO}", f"v_lshrrev_b32 v{VL}, 5, v{V_LANE}", f"v_lshl_add_u32 v{VO}, v{VL}, 4, v{VO}")
        A(f"v_lshlrev_b32 v{VL}, 4, v{V_LANE}")
        A(f"s_mul_i32 s{S_PART}, s{S_B}, {224*1024}", f"s_lshl_b32 s{S_T1}, s{S_J}, 15", f"s_add_u32 s{S_PART}, s{S_PART}, s{S_T1}")
        A(f"s_lshl_b32 s{S_T1}, s{S_C}, 8", f"s_add_u32 s{S_PART}, s{S_PART}, s{S_T1}", f"s_lshl_b32 s{S_T1}, s{S_WAVE}, 6", f"s_add_u32 s{S_PART}, s{S_PART}, s{S_T1}")
        A("s_mov_b32 s78, 0x3f80", "s_mov_b32 s79, 0x3f800000")
        A("s_waitcnt vmcnt(0)", "s_barrier")
        self.tstamp("ack2")
        if lw:
            self.flag_store(FLAG2)
        A(f"s_cmp_eq_u32 s{S_J}, 7", f"s_cbranch_scc1 L_fin_{tag}")
        if lw:
            A(f"s_andn2_b32 s{S_T0}, s2, 7", f"v_add_u32 v{V_EP+6}, s{S_T0}, v{V_LANE}", f"v_lshlrev_b32 v{V_EP+6}, 7, v{V_EP+6}", f"v_add_u32 v{V_EP+6}, {FLAG2}, v{V_EP+6}")
            self.poll(8, V_EP + 6)
        A("s_barrier")
        self.tstamp("poll2")
        for u in range(2):
            for sp in range(8):
                d = (u * 8 + sp) * 4
                A(f"s_add_u32 s{S_T1}, s{S_PUB}, {sp*65536 + u*1024}")
                A(f"buffer_load_dwordx4 {vr(d,4)}, v{VL}, s[{SRD_WS}:{SRD_WS+3}], s{S_T1} offen sc1")
        if "tst2" in self.dbg:
            A("s_waitcnt vmcnt(0)"); self.tstamp("ld2")
        for u in range(2):
            lo = 128 + u * 8; hi = lo + 4
            for sp in range(8):
                d = (u * 8 + sp) * 4
                if sp in (0, 4): A(f"s_waitcnt vmcnt({(2 - u) * 8 - sp - 4 + u})")
                for q in range(4):
                    if "nodot" in self.dbg:
                        if sp == 0: A(f"v_lshlrev_b32 v{lo+q}, 16, v{d+q}", f"v_and_b32 v{hi+q}, 0xffff0000, v{d+q}")
                        else: A(f"v_lshlrev_b32 v{160+q}, 16, v{d+q}", f"v_and_b32 v{164+q}, 0xffff0000, v{d+q}", f"v_add_f32 v{lo+q}, v{lo+q}, v{160+q}", f"v_add_f32 v{hi+q}, v{hi+q}, v{164+q}")
                    else:
                        A(f"v_dot2_f32_bf16 v{lo+q}, v{d+q}, s78, {'0' if sp == 0 else f'v{lo+q}'}", f"v_dot2_f32_bf16 v{hi+q}, v{d+q}, s79, {'0' if sp == 0 else f'v{hi+q}'}")
            r = 168 + u * 4
            for q in range(4): A(f"v_cvt_pk_bf16_f32 v{r+q}, v{lo+q}, v{hi+q}")
            A("s_nop 1")
            A(f"v_permlane32_swap_b32 v{r}, v{r+2}", f"v_permlane32_swap_b32 v{r+1}, v{r+3}")
            A(f"s_add_u32 s{S_T1}, s{S_PART}, {u*32}")
            A(f"buffer_store_dwordx4 {vr(r,4)}, v{VO}, s[{SRD_OUT}:{SRD_OUT+3}], s{S_T1} offen")
        A.label(f"L_fin_{tag}")
        if self.timing: A("s_waitcnt vmcnt(0)")

    def path(self, lw):
        A = self.A
        nblk = 1 if lw else 2
        self.lock = False
        if lw:
            A.label("L_LW")
            self.srds_rest()
            if self.stage >= 3:
                lb = self.lab("noep")
                A("s_cmp_lg_u32 s2, 0", f"s_cbranch_scc1 {lb}")
                A("s_memrealtime s[100:101]", "s_waitcnt lgkmcnt(0)", "s_or_b32 s100, s100, 1")
                A(f"v_mov_b32 v{V_EP}, s100", f"v_mov_b32 v{V_EP+1}, s101", f"v_mov_b32 v{V_EP+6}, 0")
                A(f"s_mov_b64 s[{S_T2}:{S_T3}], exec", "s_mov_b64 exec, 1")
                A(f"global_store_dwordx2 v{V_EP+6}, v[{V_EP}:{V_EP+1}], s[{S_DBG}:{S_DBG+1}] sc1")
                A(f"s_mov_b64 exec, s[{S_T2}:{S_T3}]")
                A.label(lb)
            self.addr_regs()
        else:
            self.q_slots_post()
            A(f"s_mov_b32 s{S_KC}, s{S_ROT}")
            self.pstamp(2)
            for g in self.q_dma(0, self.QSTEP[0]): A(*g)
            self.pstamp(3)
            self.srds_rest()
            self.addr_regs()
            self.pstamp(4)
            for g in self.q_dma(1, self.QSTEP[1]): A(*g)
            self.pstamp(5)
        A(f"s_add_u32 s{S_T0}, s{S_C}, s{S_WAVE}", f"s_and_b32 s{S_T0}, s{S_T0}, 3", f"s_lshl_b32 s{S_WOOFF}, s{S_T0}, 17")
        A(f"s_lshl_b32 s{S_WOLDS}, s{S_WAVE}, 15")
        A(f"s_mov_b32 s{S_KOFF}, {4*8192}", f"s_mov_b32 s{S_VOFF}, {3*8192}")
        self.stamp(1)
        if not lw: A("s_waitcnt vmcnt(12)" if "q0" not in self.dbg else "s_waitcnt vmcnt(0)")
        self.pstamp(6)
        A("s_barrier")
        self.pstamp(7)
        for r in self.q_reads(0, 0, nblk): A(r)
        self.stamp(2)
        for i in range(7):
            self.q_iter(i, nblk, lw)
            if "qst" in self.dbg and i in (0, 1, 2, 4): self.stamp({0: 3, 1: 4, 2: 5, 4: 6}[i])
        self.q_last(nblk, lw)
        self.stamp(3 if "qst" not in self.dbg else 7)
        self.lock = True
        if self.stage == 1:
            self.dump_frags(nblk, lambda b, c: ar(QF(b, c), 4)); A("s_branch L_end"); return
        if "exitq" in self.dbg:
            self.dump_stamps(); A("s_endpgm")
        self.attention(lw)
        self.stamp(5)
        if "exita" in self.dbg:
            self.dump_stamps(); A("s_endpgm")
        if self.stage == 2:
            A("s_nop 7", "s_nop 7")
            self.normalize(nblk)
            self.dump_frags(nblk, lambda b, c: vr(OFR(b, c), 4))
            self.stamp(6); self.stamp(7)
            self.dump_stamps()
            A("s_branch L_end"); return
        self.tail(lw)
        self.tstamp("end")
        self.stamp(12)
        self.dump_stamps()
        A("s_branch L_end")

    def build(self):
        A = self.A
        hdr = []
        hdr.append(open("standalone__gqa_block_cached__near_ridge.s.ref").read().split("; Override")[0].rstrip())
        hdr.append(f"; @launch grid=(256,1,1) block=(256,1,1) lds={LDS_BYTES}")
        hdr.append('.amdgcn_target "amdgcn-amd-amdhsa--gfx950"')
        hdr.append(f".text\n.globl {NAME}\n.p2align 8\n.type {NAME},@function\n{NAME}:")
        self.prologue()
        self.path(False)
        self.path(True)
        if self.stage >= 3:
            self.slow_path(False)
            self.slow_path(True)
        A.label("L_end")
        A("s_endpgm")
        A.L = check_hazards(A.L, fix=True)
        tail = f""".section .rodata,"a"
.p2align 6
.amdhsa_kernel {NAME}
  .amdhsa_next_free_vgpr 512
  .amdhsa_next_free_sgpr 102
  .amdhsa_accum_offset 256
  .amdhsa_group_segment_fixed_size 0
  .amdhsa_kernarg_size 64
  .amdhsa_user_sgpr_count 2
  .amdhsa_user_sgpr_kernarg_segment_ptr 1
  .amdhsa_system_sgpr_workgroup_id_x 1
.end_amdhsa_kernel
"""
        return "\n".join(hdr) + "\n" + A.text() + tail

if __name__ == "__main__":
    stage = int(sys.argv[1]) if len(sys.argv) > 1 else 3
    out = sys.argv[2] if len(sys.argv) > 2 else "k.s"
    timing = len(sys.argv) > 3 and sys.argv[3] == "t"
    dbg = sys.argv[4].split(",") if len(sys.argv) > 4 else ()
    open(out, "w").write(Gen(stage, timing, dbg).build())
```

```python
import sys, struct
sys.path.insert(0, "dev")
from asmlib import *

NAME = "standalone__gqa_block_cached__near_ridge_kernel"
XOFF = 0; WOFF = XOFF + 28672; QBUF = 45056
RBASE = 98304
KSLOT = [139264, 155648, 122880, 131072]
VSLOT = [147456, 98304, 106496, 114688]
WOREG = [0, 32768, 65536]
SCRATCH = VSLOT[1]
LDS_BYTES = 163840
FLAG1 = 0; FLAG1B = 0x10000; FLAG2 = 0x20000; FLAG2B = 0x30000; OFRAG = 0x100000; PART = 0x1200000; STAMPS = 0x4000000
import os
HIGHWS = int(os.environ.get('HIGHWS', '0'), 0)
OFRAG += HIGHWS; PART += HIGHWS
try:
    XB_ += HIGHWS
except NameError:
    pass
SRD_X, SRD_WQ, SRD_K, SRD_V, SRD_WO = 4, 8, 12, 16, 20
S_OUT, S_DBG, S_WS = 24, 26, 28
S_WAVE, S_B, S_H, S_C, S_J, S_ROT, S_KC, S_CNT, S_T0, S_T1 = 30, 31, 32, 33, 34, 35, 36, 37, 38, 39
S_EP = 40
S_T2, S_T3 = 42, 43
KA0, KA1 = 44, 52
SLOT_SRD = [60, 64, 68, 72]
SRD_WS = 60; SRD_OUT = 64
SLOT_BASE = [76, 77, 78, 79]; SLOT_STRIDE = [80, 81, 82, 83]; SLOT_LDS = [84, 85, 86, 87]
S_KOFF, S_VOFF = 88, 89
S_WOOFF, S_WOLDS = 90, 91
S_TS = 92
V_LANE = 255
KADDR = 240; VADDR = 248
VOFFK = 228; VOFFV = 232; VOFFO = 233
V_LA, V_LB = 237, 238
V_T = [252, 253, 254, 239]
SA, SB = 128, 144
PA, PB = 160, 168
WADDR = 128; XADDR = 132; SLOTV = 136; RAWX = 152; RAWW = 156; XADDR2 = 160; WADDR2 = 164
V_ZERO = 192
V_EP = 196
VL16 = 204; W_LO = 205; W_MID = 209
V_VO = 225; V_VL = 226; V_P2 = 224
S_RA = 81; S_OA = 82; S_ONE_LO = 83; S_ONE_HI = 84
def ACC(blk, db): return blk * 64 + db * 16
def WF(st, ks, db): return st * 64 + (ks * 4 + db) * 4
def XF(st, blk, ks): return 128 + st * 32 + (blk * 4 + ks) * 4
def QF(blk, c): return 128 + blk * 32 + c * 4
def KF(c): return 192 + c * 4
def VF(db, ks): return 224 + (ks * 4 + db) * 4
def OFR(blk, kk): return 128 + blk * 32 + kk * 4
def PFR(o, blk, kk): return (o - 1) * 64 + blk * 32 + kk * 4
def WOF(par, nb): return 192 + par * 16 + nb * 4
QP = [int(x) for x in os.environ.get('QP', '15,29').split(',')]
KVPLAN = os.environ.get('KVPLAN', 'a')
QSCALE = 0.08838834764831845 * 1.4426950408889634
def f2u(x): return struct.unpack("<I", struct.pack("<f", x))[0]
MFMA = "v_mfma_f32_32x32x16_bf16"

class Gen:
    def __init__(self, stage=3, timing=False, dbg=()):
        self.A = Asm(); self.stage = stage; self.timing = timing; self.dbg = set(dbg); self.uid = 0

    def lab(self, p):
        self.uid += 1; return f"L_{p}{self.uid}"

    def weave(self, mfmas, gaps, pre=None):
        A = self.A
        for i, (m, g) in enumerate(zip(mfmas, gaps)):
            if pre and i in pre:
                for x in pre[i]: A(x)
            if m: A(m)
            for x in g: A(x)

    def tstamp(self, name):
        order = {"tst": ["T0", "bar0", "st1", "own", "ack1", "poll1", "phA", "phB"], "tst2": ["T0", "phB", "ack2", "poll2", "ld2", "end", "x", "y"]}
        for k, lst in order.items():
            if k in self.dbg and self.timing and name in lst:
                self.A("s_memtime s[100:101]", "s_waitcnt lgkmcnt(0)", f"s_mov_b32 s{S_TS+lst.index(name)}, s100")

    def rstamp(self, slot):
        if "tst2" in self.dbg and self.timing:
            self.A("s_memrealtime s[100:101]", "s_waitcnt lgkmcnt(0)", f"s_mov_b32 s{S_TS+slot}, s100")

    def pstamp(self, idx):
        if "pro" in self.dbg and self.timing:
            self.A("s_memtime s[100:101]", "s_waitcnt lgkmcnt(0)", f"s_mov_b32 s{S_TS+idx}, s100")

    def stamp(self, idx):
        if "pro" in self.dbg and idx != 0: return
        if "tst" in self.dbg or "tst2" in self.dbg: return
        if "qst" in self.dbg and getattr(self, "lock", False): return
        if self.stage >= 3 and "qst" not in self.dbg:
            idx = {0: 0, 2: 1, 3: 2, 5: 3, 10: 4, 11: 5, 7: 6, 12: 7}.get(idx)
            if idx is None: return
        if self.timing:
            self.A("s_memtime s[100:101]", "s_waitcnt lgkmcnt(0)", f"s_mov_b32 s{S_TS+idx}, s100")

    def dump_stamps(self):
        if not self.timing: return
        A = self.A
        A("s_memrealtime s[100:101]", "s_waitcnt lgkmcnt(0)")
        A(f"s_lshl_b32 s{S_T0}, s2, 2", f"s_add_u32 s{S_T0}, s{S_T0}, s{S_WAVE}", f"s_lshl_b32 s{S_T0}, s{S_T0}, 6", f"s_add_u32 s{S_T0}, s{S_T0}, {STAMPS:#x}")
        A(f"v_mov_b32 v20, s{S_T0}")
        for i in range(8): A(f"v_mov_b32 v{4+i}, s{S_TS+i}")
        A(f"v_mov_b32 v12, s3", "v_mov_b32 v13, s100", "v_mov_b32 v14, 0", "v_mov_b32 v15, 0")
        A(f"v_cmp_eq_u32 vcc, 0, v{V_LANE}", "s_and_saveexec_b64 s[100:101], vcc")
        for i in range(3): A(f"global_store_dwordx4 v20, v[{4+4*i}:{7+4*i}], s[{S_WS}:{S_WS+1}] offset:{16*i}")
        A("s_waitcnt vmcnt(0)", "s_mov_b64 exec, s[100:101]")

    def prologue(self):
        A = self.A
        A("s_cmp_ge_u32 s2, 256", "s_cbranch_scc1 L_end")
        if "exit0" in self.dbg: A("s_endpgm")
        if self.timing:
            A("s_memrealtime s[100:101]", "s_waitcnt lgkmcnt(0)", "s_mov_b32 s3, s100")
            self.stamp(0)
        A(f"s_load_dwordx8 s[{KA0}:{KA0+7}], s[0:1], 0", f"s_load_dwordx8 s[{KA1}:{KA1+7}], s[0:1], 32")
        A("v_lshrrev_b32 v1, 6, v0", f"v_and_b32 v{V_LANE}, 63, v0")
        A(f"v_readfirstlane_b32 s{S_WAVE}, v1")
        A("s_nop 3")
        if "nocodepf" not in self.dbg:
            A(f"v_and_b32 v20, 15, v{V_LANE}", f"s_lshr_b32 s{S_T0}, s2, 3", f"s_lshl_b32 s{S_T0}, s{S_T0}, 4")
            A(f"s_cmp_lg_u32 s{S_WAVE}, 3", "s_cbranch_scc1 L_nopf")
            A("s_getpc_b64 s[100:101]")
            A.label("L_pc0")
            A(f"s_sub_u32 s100, s100, L_pc0-{NAME}", "s_subb_u32 s101, s101, 0")
            A(f"v_add_u32 v20, s{S_T0}, v20", "v_lshlrev_b32 v20, 7, v20")
            A(f"v_min_u32 v20, L_end-{NAME}, v20", "global_load_dword v21, v20, s[100:101]")
            A.label("L_nopf")
        A(f"s_and_b32 s{S_J}, s2, 7", f"s_lshr_b32 s{S_C}, s2, 3", f"s_and_b32 s{S_C}, s{S_C}, 3", f"s_lshr_b32 s{S_B}, s2, 5")
        A(f"s_lshl_b32 s{S_H}, s{S_J}, 2", f"s_add_u32 s{S_H}, s{S_H}, s{S_C}")
        A(f"s_lshl_b32 s{S_ROT}, s{S_C}, 1", f"s_add_u32 s{S_ROT}, s{S_ROT}, s{S_B}", f"s_and_b32 s{S_ROT}, s{S_ROT}, 7")
        L = V_LANE
        A(f"v_lshrrev_b32 v2, 4, v{L}", f"v_and_b32 v3, 15, v{L}", f"v_and_b32 v4, 31, v{L}", f"v_lshrrev_b32 v5, 5, v{L}")
        A("v_lshrrev_b32 v6, 2, v3", "v_and_b32 v7, 3, v3")
        A("v_lshlrev_b32 v8, 2, v2", "v_xor_b32 v8, v8, v3", "v_lshlrev_b32 v8, 4, v8")
        A(f"v_lshl_add_u32 v{RAWW}, v2, 13, v8")
        for j in range(1, 4): A(f"v_add_u32 v{RAWW+j}, {j*31744}, v{RAWW}")
        A(f"v_and_b32 v9, 7, v{L}", "v_xor_b32 v9, v9, v2", "v_lshlrev_b32 v9, 4, v9", f"v_lshrrev_b32 v10, 3, v{L}")
        A(f"v_lshl_add_u32 v{RAWX}, v10, 10, v9")
        A(f"v_xor_b32 v{RAWX+1}, 64, v{RAWX}", f"v_add_u32 v{RAWX+1}, 7168, v{RAWX+1}")
        A(f"v_add_u32 v{RAWX+2}, 14336, v{RAWX}")
        A(f"v_add_u32 v{RAWX+3}, 14336, v{RAWX+1}")
        self.q_slots_pre()
        A(f"s_mov_b32 s{SLOT_SRD[0]+3}, 0x20000")
        A("s_waitcnt lgkmcnt(0)")
        self.pstamp(1)
        x, k, v, wq, wo = KA0, KA0+2, KA0+4, KA0+6, KA1
        A(f"s_mul_i32 s{S_T0}, s{S_B}, 229376")
        A(f"s_add_u32 s{SRD_X}, s{x}, s{S_T0}", f"s_addc_u32 s{SRD_X+1}, s{x+1}, 0", f"s_mov_b32 s{SRD_X+2}, 229376", f"s_mov_b32 s{SRD_X+3}, 0x20000")
        A(f"s_lshl_b32 s{S_T0}, s{S_H}, 8")
        A(f"s_add_u32 s{SRD_WQ}, s{wq}, s{S_T0}", f"s_addc_u32 s{SRD_WQ+1}, s{wq+1}, 0", f"s_sub_u32 s{SRD_WQ+2}, 0x400000, s{S_T0}", f"s_mov_b32 s{SRD_WQ+3}, 0x20000")
        A(f"s_cmp_eq_u32 s{S_WAVE}, 3", "s_cbranch_scc1 L_LW")

    def srds_rest(self):
        A = self.A
        x, k, v, wq, wo = KA0, KA0+2, KA0+4, KA0+6, KA1
        A(f"s_lshl_b32 s{S_T0}, s{S_B}, 5", f"s_add_u32 s{S_T0}, s{S_T0}, s{S_H}", f"s_lshl_b32 s{S_T0}, s{S_T0}, 18")
        A(f"s_add_u32 s{SRD_K}, s{k}, s{S_T0}", f"s_addc_u32 s{SRD_K+1}, s{k+1}, 0", f"s_mov_b32 s{SRD_K+2}, 0x40000", f"s_mov_b32 s{SRD_K+3}, 0x20000")
        A(f"s_add_u32 s{SRD_V}, s{v}, s{S_T0}", f"s_addc_u32 s{SRD_V+1}, s{v+1}, 0", f"s_mov_b32 s{SRD_V+2}, 0x40000", f"s_mov_b32 s{SRD_V+3}, 0x20000")
        A(f"s_lshl_b32 s{S_T0}, s{S_J}, 19", f"s_lshl_b32 s{S_T1}, s{S_C}, 8", f"s_add_u32 s{S_T0}, s{S_T0}, s{S_T1}")
        A(f"s_add_u32 s{SRD_WO}, s{wo}, s{S_T0}", f"s_addc_u32 s{SRD_WO+1}, s{wo+1}, 0", f"s_sub_u32 s{SRD_WO+2}, 0x400000, s{S_T0}", f"s_mov_b32 s{SRD_WO+3}, 0x20000")
        A(f"s_mov_b64 s[{S_OUT}:{S_OUT+1}], s[{KA1+2}:{KA1+3}]", f"s_mov_b64 s[{S_DBG}:{S_DBG+1}], s[{KA1+4}:{KA1+5}]", f"s_mov_b64 s[{S_WS}:{S_WS+1}], s[{KA1+6}:{KA1+7}]")

    def addr_regs(self):
        A = self.A
        A(f"v_lshl_add_u32 v{VOFFV}, v2, 8, v8")
        A("v_xor_b32 v9, v3, v2", "v_lshlrev_b32 v9, 4, v9", f"v_lshl_add_u32 v{VOFFK}, v2, 8, v9")
        for j in range(1, 4): A(f"v_xor_b32 v{VOFFK+j}, {j<<6}, v{VOFFK}")
        A(f"v_lshl_add_u32 v{VOFFO}, v2, 10, v8")
        for j in range(1, 4): A(f"v_add_u32 v{VOFFO+j}, {j*3072}, v{VOFFO}")
        A("v_and_b32 v9, 15, v4", "v_xor_b32 v9, v9, v5", "v_lshlrev_b32 v9, 4, v9", "v_lshl_add_u32 v9, v4, 8, v9", f"v_add_u32 v{KADDR}, {RBASE}, v9")
        for c in range(1, 8): A(f"v_xor_b32 v{KADDR+c}, {c<<5}, v{KADDR}")
        A("v_and_b32 v10, 1, v2", "v_lshlrev_b32 v10, 1, v10", "v_lshlrev_b32 v11, 2, v6", "v_or_b32 v10, v10, v11")
        A("v_lshrrev_b32 v11, 1, v7", "v_or_b32 v11, v11, v10", "v_lshlrev_b32 v11, 4, v11")
        A("v_and_b32 v12, 1, v7", "v_lshl_add_u32 v11, v12, 3, v11")
        A("v_lshl_add_u32 v12, v5, 2, v6", "v_lshl_add_u32 v11, v12, 8, v11", f"v_add_u32 v{VADDR}, {RBASE}, v11")
        for d in range(1, 4): A(f"v_xor_b32 v{VADDR+d}, {d<<6}, v{VADDR}")
        A("v_and_b32 v11, 1, v7", "v_or_b32 v11, v11, v10", "v_lshlrev_b32 v11, 4, v11")
        A("v_lshrrev_b32 v12, 1, v7", "v_lshl_add_u32 v11, v12, 3, v11")
        A("v_lshl_add_u32 v12, v5, 3, v6", "v_lshl_add_u32 v11, v12, 8, v11", f"v_add_u32 v{WADDR}, {WOFF}, v11")
        for d in range(1, 4): A(f"v_xor_b32 v{WADDR+d}, {d<<6}, v{WADDR}")
        A("v_lshrrev_b32 v11, 1, v4", "v_and_b32 v11, 7, v11", "v_xor_b32 v11, v11, v5", "v_lshlrev_b32 v11, 4, v11", "v_lshl_add_u32 v11, v4, 7, v11")
        A(f"s_lshl_b32 s{S_T0}, s{S_WAVE}, 13", f"s_add_u32 s{S_T0}, s{S_T0}, {XOFF}", f"v_add_u32 v{XADDR}, s{S_T0}, v11")
        for ks in range(1, 4): A(f"v_xor_b32 v{XADDR+ks}, {ks<<5}, v{XADDR}")
        for r in range(4):
            A(f"v_add_u32 v{XADDR2+r}, {2*QBUF}, v{XADDR+r}", f"v_add_u32 v{WADDR2+r}, {2*QBUF}, v{WADDR+r}")
        for r in range(4): A(f"v_mov_b32 v{V_ZERO+r}, 0")
        A(f"v_mov_b32 v{V_LA}, 0", f"v_mov_b32 v{V_LB}, 0")

    def q_slots_pre(self):
        A = self.A
        XB, XL, WB, WL, EB, ES, EL = 76, 77, 78, 79, 80, 81, 82
        A(f"s_lshl_b32 s{XB}, s{S_WAVE}, 16", f"s_lshl_b32 s{XL}, s{S_WAVE}, 13", f"s_lshl_b32 s{WB}, s{S_WAVE}, 17")
        A(f"s_lshl_b32 s{WL}, s{S_WAVE}, 12", f"s_add_u32 s{WL}, s{WL}, {WOFF}")
        A(f"s_cmp_eq_u32 s{S_WAVE}, 0")
        A(f"s_cselect_b32 s{ES}, 7, 19")
        A(f"s_cselect_b64 s[{S_T2}:{S_T3}], -1, 0")
        A(f"s_cselect_b32 s{EB}, 6, 12", f"s_cselect_b32 s{EL}, 0, {WOFF + 3*4096 - 6*4096}")
        A(f"s_lshl_b32 s{EB}, s{EB}, 15", f"s_add_u32 s{EL}, s{EL}, {6*4096}")
        for j in range(4): A(f"v_cndmask_b32 v{SLOTV+j}, v{RAWW+j}, v{RAWX+j}, s[{S_T2}:{S_T3}]")

    def q_slots_post(self):
        A = self.A
        A(f"s_cmp_eq_u32 s{S_WAVE}, 0")
        for w in range(3): A(f"s_cselect_b32 s{SLOT_SRD[0]+w}, s{SRD_X+w}, s{SRD_WQ+w}")

    def q_dma(self, buf, step):
        XB, XL, WB, WL, EB, ES, EL = 76, 77, 78, 79, 80, 81, 82
        nt = " nt" if "qnt" in self.dbg else ""
        def loads(v, srd): return [f"buffer_load_dwordx4 v{v+j}, s[{srd}:{srd+3}], s{S_T0} offen offset:{j*1024}{nt} lds" for j in range(4)]
        out = []
        out.append([f"s_lshl_b32 s{S_T1}, s{S_KC}, 7", f"s_add_u32 m0, s{XL}, {buf*QBUF}", f"s_add_u32 s{S_T0}, s{XB}, s{S_T1}"] + loads(RAWX, SRD_X))
        out.append([f"s_add_u32 m0, s{XL}, {buf*QBUF + 4096}", f"s_add_u32 s{S_T0}, s{S_T0}, 32768"] + loads(RAWX, SRD_X))
        out.append([f"s_lshl_b32 s{S_T1}, s{S_KC}, 19", f"s_add_u32 m0, s{WL}, {buf*QBUF}", f"s_add_u32 s{S_T0}, s{WB}, s{S_T1}"] + loads(RAWW, SRD_WQ))
        lb = self.lab("qskip")
        out.append([f"s_cmp_eq_u32 s{S_WAVE}, 2", f"s_cbranch_scc1 {lb}", f"s_lshl_b32 s{S_T1}, s{S_KC}, s{ES}", f"s_add_u32 m0, s{EL}, {buf*QBUF}", f"s_add_u32 s{S_T0}, s{EB}, s{S_T1}"]
                   + loads(SLOTV, SLOT_SRD[0]) + [lb + ":"])
        out.append([f"s_add_u32 s{S_KC}, s{S_KC}, {step}", f"s_and_b32 s{S_KC}, s{S_KC}, 7"])
        return out

    def q_reads(self, st, buf, nblk):
        rd = []
        xa, wa, bo = (XADDR, WADDR, buf * QBUF) if buf < 2 else (XADDR2, WADDR2, 0)
        for ks in range(4):
            for blk in range(nblk):
                rd.append(f"ds_read_b128 {ar(XF(st,blk,ks),4)}, v{xa+ks} offset:{bo + blk*4096}")
            for db in range(4):
                for jh in range(2):
                    rd.append(f"ds_read_b64_tr_b16 {ar(WF(st,ks,db)+2*jh,2)}, v{wa+db} offset:{bo + ks*4096 + jh*1024}")
        return rd

    KVSEQ = [("K",0),("V",0),("K",1),("V",1),("K",2),("V",2),("K",3)]

    KVQ = {4: [("K",0)], 5: [("V",0), ("K",1)], 6: [("V",1), ("K",2)]}

    KVQ = {4: [("K",0)], 5: [("V",0), ("K",1)], 6: [("V",1), ("K",2)]}
    QSTEP = [2, 2, 2, 3, 2, 2, 2, 2]

    def spread_dma(self, groups, gaps, lo, hi):
        nload = sum(1 for g in groups for x in g if x.startswith("buffer_load"))
        pos = 0
        def at(): return min(hi, lo + pos * (hi - lo + 1) // max(1, nload))
        for g in groups:
            if any(x.startswith("s_cbranch") for x in g):
                gaps[at()] += g; pos += 4; continue
            pend = []
            for x in g:
                pend.append(x)
                if x.startswith("buffer_load"):
                    gaps[at()] += pend; pend = []; pos += 1
            if pend: gaps[at()] += pend

    def q_iter(self, i, nblk, lw):
        st = i & 1
        mf = []
        for ks in range(4):
            for db in range(4):
                for blk in range(nblk):
                    a = ACC(blk, db)
                    c = "0" if (i == 0 and ks == 0) else vr(a, 16)
                    mf.append(f"{MFMA} {vr(a,16)}, {ar(WF(st,ks,db),4)}, {ar(XF(st,blk,ks),4)}, {c}")
        n = len(mf)
        gaps = [[] for _ in range(n)]
        if not lw: gaps[0].append("s_waitcnt vmcnt(12)" if 1 <= i <= 5 else "s_waitcnt vmcnt(0)")
        gaps[0].append("s_barrier")
        rds = self.q_reads(st ^ 1, (i + 1) % 3, nblk)
        span = n - 4 if not lw else n - 2
        for idx, r in enumerate(rds): gaps[1 + idx * span // len(rds)].append(r)
        if not lw:
            if i == 0:
                self.spread_dma(self.q_dma(2, self.QSTEP[2]), gaps, 1, QP[0])
                self.spread_dma(self.q_dma(0, self.QSTEP[3]), gaps, QP[0] + 1, 30)
            elif i + 3 <= 7:
                self.spread_dma(self.q_dma(i % 3, self.QSTEP[i + 3]), gaps, 1, QP[1])
        else:
            dm = []
            plans = {'a': self.KVQ, 'b': {5: [("K",0), ("V",0)], 6: [("K",1), ("V",1), ("K",2)]}, 'c': {3: [("K",0)], 4: [("V",0)], 5: [("K",1), ("V",1)], 6: [("K",2)]},
                     'd': {6: [("K",0), ("V",0), ("K",1), ("V",1), ("K",2)]}}
            for kind, t in plans[KVPLAN].get(i, []): dm += self.tile_dma(kind, t % 4, f"{t*8192}")
            if dm:
                per = -(-len(dm) // (n - 2))
                for idx, x in enumerate(dm): gaps[1 + idx // per].append(x)
        self.A("s_waitcnt lgkmcnt(0)")
        self.weave(mf, gaps)

    def run_sched(self, mf, mem, pre, streams, budget=21):
        A = self.A
        ptr = [0] * len(streams)
        def emit(k):
            A(streams[k][ptr[k]][0]); ptr[k] += 1
        for s in range(len(mf)):
            for k, st in enumerate(streams):
                last = max([i for i in range(ptr[k], len(st)) if st[i][3] <= s], default=-1)
                while ptr[k] <= last: emit(k)
            for x in pre.get(s, []): A(x)
            if mf[s]: A(mf[s])
            for x in mem.get(s, []): A(x)
            left = budget; n = len(mem.get(s, []))
            progress = True
            while progress and n < 5:
                progress = False
                for k, st in enumerate(streams):
                    if ptr[k] < len(st) and st[ptr[k]][2] <= s and st[ptr[k]][1] <= left:
                        left -= st[ptr[k]][1]; n += 1; emit(k); progress = True
                        break
        for k, st in enumerate(streams):
            while ptr[k] < len(st): emit(k)

    def q_last(self, nblk, lw):
        A = self.A
        st = 1
        tiles = [(blk, db) for blk in range(nblk) for db in range(4)]
        mf = []
        for blk, db in tiles:
            a = ACC(blk, db)
            for ks in range(4):
                mf.append(f"{MFMA} {vr(a,16)}, {ar(WF(st,ks,db),4)}, {ar(XF(st,blk,ks),4)}, {vr(a,16)}")
        n = len(mf)
        zero = lambda blk: [f"{MFMA} {vr(ACC(blk,db),16)}, {vr(V_ZERO,4)}, {vr(V_ZERO,4)}, 0" for db in range(4)]
        mf += zero(0)
        mf += [f"{MFMA} {vr(SA,16)}, {ar(KF(c),4)}, {ar(QF(0,c),4)}, {'0' if c == 0 else vr(SA,16)}" for c in range(8)]
        if nblk == 2: mf += zero(1)
        streams = []
        for blk in range(nblk):
            stm = []; late = []
            for db in range(4):
                ti = blk * 4 + db
                a = ACC(blk, db); g0 = 4 * ti + 6
                due = (n + db) if blk == 0 else (n + 12 + db)
                for r in range(a, a + 16): stm.append((f"v_mul_f32 v{r}, s{S_T2}, v{r}", 4, g0, due))
                for u in range(2):
                    for pj in range(4):
                        r = a + 8*u + 2*pj
                        stm.append((f"v_cvt_pk_bf16_f32 v{r}, v{r}, v{r+1}", 4, g0, due))
                for u in range(2):
                    for pj in range(4):
                        r = a + 8*u + 2*pj
                        it = (f"v_accvgpr_write_b32 a{QF(blk, 2*db+u)+pj}, v{r}", 4, g0 if blk == 0 else n, due)
                        (stm if blk == 0 else late).append(it)
            streams.append(stm + late)
        mem = {}; pre = {}
        kb = n - 3
        pre[kb + 1] = (["s_waitcnt vmcnt(48)"] if lw else []) + ["s_barrier"]
        for c in range(8): mem.setdefault(kb + 1 + c // 4, []).append(f"ds_read_b128 {ar(KF(c),4)}, v{KADDR+c} offset:{KSLOT[0]-RBASE}")
        pre[n + 4] = ["s_waitcnt lgkmcnt(0)"]
        if lw:
            dm = self.tile_dma("V", 2, f"{2*8192}") + self.tile_dma("K", 3, f"{3*8192}")
            for idx, x in enumerate(dm): mem.setdefault(idx * kb // len(dm), []).append(x)
        A(f"s_mov_b32 s{S_T2}, {f2u(QSCALE):#x}", "s_waitcnt lgkmcnt(0)")
        self.run_sched(mf, mem, pre, streams, budget=22)

    def dump_frags(self, nblk, fn):
        A = self.A
        A(f"s_lshl_b32 s{S_T0}, s2, 16", f"s_lshl_b32 s{S_T1}, s{S_WAVE}, 14", f"s_add_u32 s{S_T0}, s{S_T0}, s{S_T1}", f"s_add_u32 s{S_T0}, s{S_T0}, {OFRAG:#x}")
        A(f"v_lshlrev_b32 v{V_T[2]}, 4, v{V_LANE}", f"v_add_u32 v{V_T[2]}, s{S_T0}, v{V_T[2]}")
        for blk in range(nblk):
            for c in range(8):
                A(f"v_add_u32 v{V_T[3]}, {(blk*8+c)*1024}, v{V_T[2]}")
                A(f"global_store_dwordx4 v{V_T[3]}, {fn(blk,c)}, s[{S_WS}:{S_WS+1}]")
        A("s_waitcnt vmcnt(0)")

    def tile_dma(self, kind, slot, soff, nt=True):
        out = []
        if "nont" in self.dbg: nt = False
        base = (KSLOT if kind == "K" else VSLOT)[slot]
        srd = SRD_K if kind == "K" else SRD_V
        for g in range(2):
            out.append(f"s_add_u32 s{S_T1}, {soff}, {g*4096}" if not soff.isdigit() else f"s_mov_b32 s{S_T1}, {int(soff)+g*4096}")
            out.append(f"s_mov_b32 m0, {base + g*4096}")
            for j in range(4):
                vo = VOFFK + j if kind == "K" else VOFFV
                out.append(f"buffer_load_dwordx4 v{vo}, s[{srd}:{srd+3}], s{S_T1} offen offset:{j*1024}{' nt' if nt else ''} lds")
        res = []
        i = 0
        while i < len(out):
            res += [out[i+1], out[i]] + out[i+2:i+6]; i += 6
        return res

    def sm_items(self, blk, exp_gaps, lo=0, hi=16, extra_add=(), extra_cvt=(), skip=(15,)):
        S = SA if blk == 0 else SB; P = PA if blk == 0 else PB; Lr = V_LA if blk == 0 else V_LB
        out = {}
        def put(g, prio, ins):
            while g in skip: g += 1
            out.setdefault(g, []).append((prio, ins))
        for e in extra_add: put(0, 1, f"v_add_f32 v{Lr}, v{S+e}, v{Lr}")
        for p in extra_cvt: put(0, 2, f"v_cvt_pk_bf16_f32 v{P+p}, v{S+2*p}, v{S+2*p+1}")
        for i in range(lo, hi):
            g = exp_gaps[i - lo]
            put(g, 0, f"v_exp_f32 v{S+i}, v{S+i}")
            put(g + 1, 1, f"v_add_f32 v{Lr}, v{S+i}, v{Lr}")
            if i & 1:
                put(g + 1, 2, f"v_cvt_pk_bf16_f32 v{P+i//2}, v{S+i-1}, v{S+i}")
        return out

    def attn_iter(self, t, lw):
        A = self.A
        tm = t % 4
        do_qk = t + 1 <= 31; do_pv = t >= 0
        do_kr = t + 2 <= 31; do_vr = 0 <= t + 1 <= 31
        def qk(blk):
            S = SA if blk == 0 else SB
            return [f"{MFMA} {vr(S,16)}, {ar(KF(c),4)}, {ar(QF(blk,c),4)}, {'0' if c == 0 else vr(S,16)}" for c in range(8)] if do_qk else [None]*8
        def pv(blk):
            P = PA if blk == 0 else PB
            return [f"{MFMA} {vr(ACC(blk,db),16)}, {ar(VF(db,ks),4)}, {vr(P+4*ks,4)}, {vr(ACC(blk,db),16)}" for ks in range(2) for db in range(4)] if do_pv else [None]*8
        mf = qk(0) + pv(0) + (qk(1) + pv(1) if not lw else [None]*16)
        if t == -1: mf[:8] = [None] * 8
        gaps = [[] for _ in range(33)]
        def merge(d):
            for g, lst in d.items():
                if g < 32: gaps[g] += lst
        BEXP = [28,29,30,31] + list(range(0,12))
        AEXP = [12,13,13,14] + list(range(16,28))
        if not lw:
            if t >= 0: merge(self.sm_items(1, BEXP[4:], lo=4, hi=16, extra_add=(3,), extra_cvt=(1,)))
            if do_qk:
                merge(self.sm_items(0, AEXP))
                merge(self.sm_items(1, BEXP[:4], lo=0, hi=4))
        else:
            if do_qk: merge(self.sm_items(0, AEXP))
        gl = [[ins for _, ins in sorted(g, key=lambda x: x[0])] for g in gaps]
        mem = [[] for _ in range(33)]
        kslot = (t + 2) % 4; vslot = (t + 1) % 4
        kr = [f"ds_read_b128 {ar(KF(c),4)}, v{KADDR+c} offset:{KSLOT[kslot]-RBASE}" for c in range(8)] if do_kr else []
        vrd = []
        if do_vr:
            for ks in range(2):
                for db in range(4):
                    for jh in range(2):
                        vrd.append(f"ds_read_b64_tr_b16 {ar(VF(db,ks)+2*jh,2)}, v{VADDR+db} offset:{VSLOT[vslot]-RBASE + ks*4096 + jh*2048}")
        if not lw:
            for c, r in enumerate(kr): mem[16 + c].append(r)
            for i, r in enumerate(vrd): mem[24 + i // 2].append(r)
        else:
            for c, r in enumerate(kr): mem[16 + c // 2].append(r)
            for i, r in enumerate(vrd): mem[20 + i // 4].append(r)
        bar = []
        if lw:
            w = ({28: 24, 29: 24, 30: 24} if self.stage >= 3 else {28: 24, 29: 8, 30: 0}).get(t, 32)
            if "kv0" in self.dbg: w = 0
            if t <= 30: bar.append(f"s_waitcnt vmcnt({w})")
        if (not lw) and t == 31 and self.stage >= 3: bar.append("s_waitcnt vmcnt(0)")
        bar.append("s_barrier")
        if "dly" in self.dbg: bar += ["s_nop 15"] * 6
        if "kv16" in self.dbg and lw: bar = [x.replace("vmcnt(32)", "vmcnt(16)").replace("vmcnt(24)", "vmcnt(8)") for x in bar]
        mem[15] = bar
        if lw:
            dm = []
            kpart = self.tile_dma("K", (t + 1) % 4, f"s{S_KOFF}") + [f"s_add_u32 s{S_KOFF}, s{S_KOFF}, 8192"]
            vpart = self.tile_dma("V", t % 4, f"s{S_VOFF}") + [f"s_add_u32 s{S_VOFF}, s{S_VOFF}, 8192"]
            if self.inloop and tm == 3:
                lb = self.lab("nok")
                dm = [f"s_cmp_eq_u32 s{S_CNT}, 6", f"s_cbranch_scc1 {lb}"] + kpart + [lb + ":"] + vpart
            elif t <= 26: dm = kpart + vpart
            elif t == 28 and self.stage >= 3: dm = self.wo_tile_dma(3, 0) + self.wo_tile_dma(3, 1)
            elif t in (29, 30) and self.stage >= 3: dm = self.wo_tile_dma(3, t - 27)
            mem[16] = dm + mem[16]
        if (not lw) and self.stage >= 3 and (t == -1 or (tm == 0 and 0 <= t <= 24)):
            dm = self.wo_group_dma()
            for i, x in enumerate(dm): mem[1 + i // 3].append(x)
        if t == 28 and self.stage >= 3 and lw:
            A(f"v_mov_b32 v{V_EP+6}, 0", f"global_load_dwordx2 v[{V_EP}:{V_EP+1}], v{V_EP+6}, s[{S_DBG}:{S_DBG+1}] sc1")
        if do_qk and t >= 0: A("s_waitcnt lgkmcnt(15)")
        for g in range(32):
            if g == 8 and do_pv: A("s_waitcnt lgkmcnt(0)")
            if mf[g]: A(mf[g])
            for x in mem[g]: A(x)
            for x in gl[g]: A(x)

    def wo_tile_dma(self, o, tile):
        out = []
        for g in range(2):
            out.append(f"s_mov_b32 m0, {KSLOT[tile] + g*4096}")
            out.append(f"s_add_u32 s{S_T1}, s{S_WOOFF}, {tile*32768 + g*16384}")
            for j in range(4):
                out.append(f"buffer_load_dwordx4 v{VOFFO+j}, s[{SRD_WO}:{SRD_WO+3}], s{S_T1} offen offset:{j*1024}{' nt' if 'wont' in self.dbg else ''} lds")
        return out

    def wo_group_dma(self):
        out = [f"s_mov_b32 m0, s{S_WOLDS}", f"s_add_u32 s{S_WOLDS}, s{S_WOLDS}, 4096"]
        for j in range(4):
            out.append(f"buffer_load_dwordx4 v{VOFFO+j}, s[{SRD_WO}:{SRD_WO+3}], s{S_WOOFF} offen offset:{j*1024}{' nt' if 'wont' in self.dbg else ''} lds")
        out.append(f"s_add_u32 s{S_WOOFF}, s{S_WOOFF}, 16384")
        return out

    def attention(self, lw):
        A = self.A
        tag = "LW" if lw else "CW"
        if self.stage >= 3: self.tail_setup()
        self.inloop = False
        self.attn_iter(-1, lw)
        self.stamp(4)
        A(f"s_mov_b32 s{S_CNT}, 0")
        A(".p2align 4")
        A.label(f"L_attn_{tag}")
        start = len(A.L)
        self.inloop = True
        for t in range(4): self.attn_iter(t, lw)
        self.inloop = False
        body = A.L[start:]
        check_hazards(body + body, fix=False, name="attn loop " + tag)
        A(f"s_add_u32 s{S_CNT}, s{S_CNT}, 1", f"s_cmp_lt_u32 s{S_CNT}, 7", f"s_cbranch_scc1 L_attn_{tag}")
        for t in range(28, 32): self.attn_iter(t, lw)

    def l_combine(self, nblk):
        A = self.A
        R = [252, 254]
        for blk in range(nblk):
            Lr = V_LA if blk == 0 else V_LB
            A(f"v_mov_b32 v{R[blk]}, v{Lr}")
        A("s_nop 1")
        for blk in range(nblk):
            Lr = V_LA if blk == 0 else V_LB
            A(f"v_permlane32_swap_b32 v{Lr}, v{R[blk]}")
        for blk in range(nblk):
            Lr = V_LA if blk == 0 else V_LB
            A(f"v_add_f32 v{Lr}, v{Lr}, v{R[blk]}")
        for blk in range(nblk):
            Lr = V_LA if blk == 0 else V_LB
            A(f"v_rcp_f32 v{R[blk]}, v{Lr}")
        A("s_nop 0")

    def norm_block(self, blk):
        R = [252, 254][blk]
        out = []
        for db in range(4):
            a = ACC(blk, db)
            for r in range(a, a + 16, 2): out.append(f"v_pk_mul_f32 v[{r}:{r+1}], v[{r}:{r+1}], v[{R}:{R+1}] op_sel_hi:[1,0]")
            for u in range(2):
                for pj in range(4):
                    r = a + 8*u + 2*pj
                    out.append(f"v_cvt_pk_bf16_f32 v{OFR(blk, 2*db+u)+pj}, v{r}, v{r+1}")
        return out

    def normalize(self, nblk):
        self.l_combine(nblk)
        for blk in range(nblk):
            for x in self.norm_block(blk): self.A(x)

    def poll(self, nflags, vaddr_reg):
        A = self.A
        lp = self.lab("poll"); done = self.lab("polld")
        D = [214, 216, 218, 220]
        ld = lambda k: f"buffer_load_dwordx2 v[{D[k]}:{D[k]+1}], v{vaddr_reg}, s[{SRD_WS}:{SRD_WS+3}], 0 offen sc1"
        A(f"s_mov_b64 s[{S_T2}:{S_T3}], exec", f"s_mov_b64 exec, {(1 << nflags) - 1}")
        A(f"s_mov_b32 s{S_CNT}, 0")
        for k in range(3): A(ld(k), "s_nop 15", "s_nop 15")
        A.label(lp)
        for k in range(4):
            A(ld((k + 3) & 3))
            A("s_waitcnt vmcnt(3)")
            A(f"v_cmp_ne_u64 vcc, s[{S_EP}:{S_EP+1}], v[{D[k]}:{D[k]+1}]")
            A("s_nop 4")
            A(f"s_cbranch_vccz {done}")
        A(f"s_add_u32 s{S_CNT}, s{S_CNT}, 1", f"s_cmp_gt_u32 s{S_CNT}, 0x10000", f"s_cbranch_scc0 {lp}")
        A.label(done)
        A(f"s_mov_b64 exec, s[{S_T2}:{S_T3}]")

    def wo_reads(self, o, kk, par):
        reg = [W_LO, W_LO, W_MID, VADDR][o]
        t = kk >> 1
        imm = [t * 8192, 32768 + t * 8192, t * 8192, KSLOT[t] - RBASE][o] + (kk & 1) * 4096
        return [f"ds_read_b64_tr_b16 {ar(WOF(par, nb) + 2*jh, 2)}, v{reg+nb} offset:{imm + jh*2048}" for nb in range(4) for jh in range(2)]

    def oproj_steps(self, steps, pre=None, fill=None, first_c0=()):
        A = self.A
        pre = pre or {}; fill = fill or {}
        for si, (o, kk, blks) in enumerate(steps):
            par = (self.opar + si) & 3
            mf = []
            for nb in range(4):
                for blk in blks:
                    a = ACC(blk, nb)
                    b = vr(OFR(blk, kk), 4) if o == 0 else ar(PFR(o, blk, kk), 4)
                    c = "0" if (si, blk) in first_c0 else vr(a, 16)
                    mf.append(f"{MFMA} {vr(a,16)}, {ar(WOF(par, nb),4)}, {b}, {c}")
            nxt = []
            if si + 2 < len(steps): nxt = self.wo_reads(steps[si+2][0], steps[si+2][1], (par + 2) & 3)
            elif self.onext and si + 2 - len(steps) < len(self.onext):
                o2, k2 = self.onext[si + 2 - len(steps)]; nxt = self.wo_reads(o2, k2, (par + 2) & 3)
            gaps = [[] for _ in mf]
            for i, r in enumerate(nxt): gaps[i * len(mf) // 8].append(r)
            f = fill.get(si, [])
            for i, x in enumerate(f): gaps[min(len(mf) - 1, i * len(mf) // max(1, len(f)))].append(x)
            for x in pre.get(si, []): A(x)
            has_next = (si + 1 < len(steps)) or bool(self.onext)
            A("s_waitcnt lgkmcnt(8)" if has_next else "s_waitcnt lgkmcnt(0)")
            self.weave(mf, gaps)
        self.opar = (self.opar + len(steps)) & 3

    def flag_store(self, base):
        A = self.A
        A(f"s_lshl_b32 s{S_T0}, s2, 7", f"s_add_u32 s{S_T0}, s{S_T0}, {base}", f"v_mov_b32 v{V_EP+6}, s{S_T0}")
        A(f"s_mov_b64 s[{S_T2}:{S_T3}], exec", "s_mov_b64 exec, 1")
        A(f"buffer_store_dwordx2 v[{V_EP}:{V_EP+1}], v{V_EP+6}, s[{SRD_WS}:{SRD_WS+3}], 0 offen sc1")
        A(f"s_mov_b64 exec, s[{S_T2}:{S_T3}]")

    def stores(self, base_sgpr, blk, first_reg):
        out = []
        for half in range(2):
            out.append(f"s_add_u32 s{S_T1}, s{base_sgpr}, {(blk*8 + half*4)*1024}")
            for q in range(4):
                out.append(f"buffer_store_dwordx4 {vr(first_reg + (half*4+q)*4, 4)}, v{VL16}, s[{SRD_WS}:{SRD_WS+3}], s{S_T1} offen offset:{q*1024} sc1")
        return out

    def tail_setup(self):
        A = self.A
        S_PUB = 76; S_PART = 77; PB = [78, 79, 80]
        A(f"s_mov_b32 s{SRD_WS}, s{S_WS}", f"s_mov_b32 s{SRD_WS+1}, s{S_WS+1}", f"s_mov_b32 s{SRD_WS+2}, 0x10000000", f"s_mov_b32 s{SRD_WS+3}, 0x20000")
        A(f"s_mov_b32 s{SRD_OUT}, s{S_OUT}", f"s_mov_b32 s{SRD_OUT+1}, s{S_OUT+1}", f"s_mov_b32 s{SRD_OUT+2}, {8*224*512*2}", f"s_mov_b32 s{SRD_OUT+3}, 0x20000")
        A(f"v_lshlrev_b32 v{VL16}, 4, v{V_LANE}", f"s_lshl_b32 s{S_T0}, s{S_WAVE}, 14", f"v_add_u32 v{VL16}, s{S_T0}, v{VL16}")
        for nb in range(4):
            A(f"v_subrev_u32 v{W_LO+nb}, {RBASE}, v{VADDR+nb}")
            A(f"v_add_u32 v{W_MID+nb}, 65536, v{W_LO+nb}")
        A(f"s_lshl_b32 s{S_PUB}, s2, 16", f"s_add_u32 s{S_PART}, s{S_PUB}, {PART:#x}", f"s_add_u32 s{S_PUB}, s{S_PUB}, {OFRAG:#x}")
        for o in range(1, 4):
            A(f"s_add_u32 s{S_T0}, s{S_C}, {o}", f"s_and_b32 s{S_T0}, s{S_T0}, 3", f"s_lshl_b32 s{S_T0}, s{S_T0}, 3", f"s_andn2_b32 s{S_T1}, s2, 24", f"s_or_b32 s{S_T0}, s{S_T0}, s{S_T1}")
            A(f"s_lshl_b32 s{S_T0}, s{S_T0}, 16", f"s_add_u32 s{PB[o-1]}, s{S_T0}, {OFRAG:#x}")
        L = V_LANE
        A(f"s_andn2_b32 s{S_T0}, s2, 7", f"v_add_u32 v{V_P2}, s{S_T0}, v{L}", f"v_lshlrev_b32 v{V_P2}, 7, v{V_P2}")
        A(f"s_lshl_b32 s{S_T0}, s{S_T0}, 16", f"s_lshr_b32 s{S_T1}, s{S_J}, 1", f"s_lshl_b32 s{S_T1}, s{S_T1}, 14", f"s_add_u32 s{S_T0}, s{S_T0}, s{S_T1}")
        A(f"s_and_b32 s{S_T1}, s{S_J}, 1", f"s_lshl_b32 s{S_T1}, s{S_T1}, 12", f"s_add_u32 s{S_T0}, s{S_T0}, s{S_T1}", f"s_lshl_b32 s{S_T1}, s{S_WAVE}, 10", f"s_add_u32 s{S_T0}, s{S_T0}, s{S_T1}")
        A(f"s_add_u32 s{S_RA}, s{S_T0}, {PART:#x}")
        A(f"s_mul_i32 s{S_OA}, s{S_B}, {224*1024}", f"s_lshr_b32 s{S_T1}, s{S_J}, 1", f"s_lshl_b32 s{S_T1}, s{S_T1}, 16", f"s_add_u32 s{S_OA}, s{S_OA}, s{S_T1}")
        A(f"s_lshl_b32 s{S_T1}, s{S_C}, 8", f"s_add_u32 s{S_OA}, s{S_OA}, s{S_T1}", f"s_and_b32 s{S_T1}, s{S_J}, 1", f"s_lshl_b32 s{S_T1}, s{S_T1}, 7", f"s_add_u32 s{S_OA}, s{S_OA}, s{S_T1}")
        A(f"s_lshl_b32 s{S_T1}, s{S_WAVE}, 5", f"s_add_u32 s{S_OA}, s{S_OA}, s{S_T1}")
        A(f"v_and_b32 v{V_VO}, 31, v{L}", f"v_lshlrev_b32 v{V_VO}, 10, v{V_VO}", f"v_lshrrev_b32 v{V_VL}, 5, v{L}", f"v_lshl_add_u32 v{V_VO}, v{V_VL}, 4, v{V_VO}", f"v_lshlrev_b32 v{V_VL}, 4, v{L}")
        A(f"s_mov_b32 s{S_ONE_LO}, 0x3f80", f"s_mov_b32 s{S_ONE_HI}, 0x3f800000")

    def slow_path(self, lw):
        A = self.A
        nblk = 1 if lw else 2
        tag = "LW" if lw else "CW"
        KA = 214; VA = 222 - 0
        VA = 176; M = [180, 181]; T = [182, 183, 184, 185]
        A.label(f"L_slow_{tag}")
        A(f"s_mov_b32 s{S_T0}, {VSLOT[0]}")
        for w in range(1, 4): A(f"s_cmp_eq_u32 s{S_WAVE}, {w}", f"s_cselect_b32 s{S_T0}, {VSLOT[w]}, s{S_T0}")
        A(f"s_sub_u32 s{S_T1}, s{S_T0}, {RBASE}")
        for c in range(8): A(f"v_add_u32 v{KA+c}, s{S_T1}, v{KADDR+c}")
        for d in range(4): A(f"v_add_u32 v{VA+d}, s{S_T1}, v{VADDR+d}")
        for r in range(nblk * 64): A(f"v_mov_b32 v{r}, 0")
        for blk in range(nblk): A(f"v_mov_b32 v{[V_LA, V_LB][blk]}, 0", f"v_mov_b32 v{M[blk]}, 0xff800000")
        A(f"s_mov_b32 s{S_KOFF}, 0")
        lp = f"L_slowl_{tag}"
        A.label(lp)
        def dma(kind):
            srd = SRD_K if kind == "K" else SRD_V
            for g in range(2):
                A(f"s_add_u32 m0, s{S_T0}, {g*4096}", f"s_add_u32 s{S_T1}, s{S_KOFF}, {g*4096}")
                for j in range(4):
                    A(f"buffer_load_dwordx4 v{VOFFK + j if kind == 'K' else VOFFV}, s[{srd}:{srd+3}], s{S_T1} offen offset:{j*1024} lds")
            A("s_waitcnt vmcnt(0)")
        dma("K")
        for c in range(8): A(f"ds_read_b128 {ar(KF(c),4)}, v{KA+c}")
        A("s_waitcnt lgkmcnt(0)")
        dma("V")
        for ks in range(2):
            for db in range(4):
                for jh in range(2): A(f"ds_read_b64_tr_b16 {ar(VF(db,ks)+2*jh,2)}, v{VA+db} offset:{ks*4096 + jh*2048}")
        for blk in range(nblk):
            S = SA if blk == 0 else SB; P = PA if blk == 0 else PB; Lr = [V_LA, V_LB][blk]
            for c in range(8): A(f"{MFMA} {vr(S,16)}, {ar(KF(c),4)}, {ar(QF(blk,c),4)}, {'0' if c == 0 else vr(S,16)}")
            A("s_nop 15", "s_nop 7")
            A(f"v_max3_f32 v{T[0]}, v{S}, v{S+1}, v{S+2}")
            for i in range(3, 15, 2): A(f"v_max3_f32 v{T[0]}, v{T[0]}, v{S+i}, v{S+i+1}")
            A(f"v_max_f32 v{T[0]}, v{T[0]}, v{S+15}", f"v_mov_b32 v{T[1]}, v{T[0]}", "s_nop 1", f"v_permlane32_swap_b32 v{T[0]}, v{T[1]}")
            A(f"v_max_f32 v{T[0]}, v{T[0]}, v{T[1]}", f"v_max_f32 v{T[0]}, v{T[0]}, v{M[blk]}")
            A(f"v_sub_f32 v{T[1]}, v{M[blk]}, v{T[0]}", f"v_exp_f32 v{T[1]}, v{T[1]}", f"v_mov_b32 v{M[blk]}, v{T[0]}")
            for i in range(16): A(f"v_sub_f32 v{S+i}, v{S+i}, v{T[0]}")
            for i in range(16): A(f"v_exp_f32 v{S+i}, v{S+i}")
            A(f"v_mul_f32 v{Lr}, v{Lr}, v{T[1]}")
            for i in range(16): A(f"v_add_f32 v{Lr}, v{Lr}, v{S+i}")
            for p in range(8): A(f"v_cvt_pk_bf16_f32 v{P+p}, v{S+2*p}, v{S+2*p+1}")
            for r in range(blk * 64, blk * 64 + 64): A(f"v_mul_f32 v{r}, v{r}, v{T[1]}")
        A("s_waitcnt lgkmcnt(0)")
        for blk in range(nblk):
            P = PA if blk == 0 else PB
            for ks in range(2):
                for db in range(4): A(f"{MFMA} {vr(ACC(blk,db),16)}, {ar(VF(db,ks),4)}, {vr(P+4*ks,4)}, {vr(ACC(blk,db),16)}")
        A("s_nop 15", "s_nop 7")
        A(f"s_add_u32 s{S_KOFF}, s{S_KOFF}, 8192", f"s_cmp_lt_u32 s{S_KOFF}, 0x40000", f"s_cbranch_scc1 {lp}")
        self.l_combine(nblk)
        A(f"s_branch L_resume_{tag}")

    def tail(self, lw):
        A = self.A
        nblk = 1 if lw else 2
        blks = list(range(nblk))
        S_PUB = 76; S_PART = 77; PB = [78, 79, 80]
        tag = "LW" if lw else "CW"
        self.l_combine(nblk)
        A(f"s_mov_b32 s{S_T0}, 0x2b800000", f"s_mov_b32 s{S_T1}, 0x53800000")
        A(f"v_cmp_nle_f32 vcc, s{S_T0}, v{V_LA}", f"v_cmp_nge_f32 s[{S_T2}:{S_T3}], s{S_T1}, v{V_LA}")
        A("s_nop 1", f"s_or_b64 s[{S_T2}:{S_T3}], s[{S_T2}:{S_T3}], vcc")
        if nblk == 2:
            A(f"v_cmp_nle_f32 vcc, s{S_T0}, v{V_LB}", "s_nop 1", f"s_or_b64 s[{S_T2}:{S_T3}], s[{S_T2}:{S_T3}], vcc")
            A(f"v_cmp_nge_f32 vcc, s{S_T1}, v{V_LB}", "s_nop 1", f"s_or_b64 s[{S_T2}:{S_T3}], s[{S_T2}:{S_T3}], vcc")
        if "forceslow" in self.dbg: A(f"s_mov_b64 s[{S_T2}:{S_T3}], -1")
        A(f"s_cmp_lg_u64 s[{S_T2}:{S_T3}], 0", f"s_cbranch_scc1 L_slow_{tag}")
        A.label(f"L_resume_{tag}")
        self.tstamp("T0")
        self.rstamp(6)
        for r in self.wo_reads(0, 0, 0) + self.wo_reads(0, 1, 1): A(r)
        for blk in blks:
            R = [252, 254][blk]
            for db in range(4):
                a = ACC(blk, db)
                for u in range(2):
                    for r in range(a + 8*u, a + 8*u + 8, 2): A(f"v_pk_mul_f32 v[{r}:{r+1}], v[{r}:{r+1}], v[{R}:{R+1}] op_sel_hi:[1,0]")
                    for pj in range(4):
                        r = a + 8*u + 2*pj
                        A(f"v_cvt_pk_bf16_f32 v{OFR(blk, 2*db+u)+pj}, v{r}, v{r+1}")
                    kk = 2*db + u
                    if kk % 4 == 0: A(f"s_add_u32 s{S_T1}, s{S_PUB}, {(blk*8 + kk)*1024}")
                    A(f"buffer_store_dwordx4 {vr(OFR(blk, kk), 4)}, v{VL16}, s[{SRD_WS}:{SRD_WS+3}], s{S_T1} offen offset:{(kk % 4)*1024} sc1")
        self.tstamp("st1")
        self.tstamp("bar0")
        self.stamp(10)
        if lw:
            lp = self.lab("ep"); dn = self.lab("epd")
            A(f"s_mov_b32 s{S_CNT}, 0")
            A.label(lp)
            A(f"v_readfirstlane_b32 s{S_EP}, v{V_EP}", f"v_readfirstlane_b32 s{S_EP+1}, v{V_EP+1}")
            A("s_nop 3", f"s_or_b32 s{S_T0}, s{S_EP}, s{S_EP+1}", f"s_cbranch_scc1 {dn}")
            A(f"s_add_u32 s{S_CNT}, s{S_CNT}, 1", f"s_cmp_gt_u32 s{S_CNT}, 0x40000", f"s_cbranch_scc1 {dn}")
            A(f"global_load_dwordx2 v[{V_EP}:{V_EP+1}], v{V_EP+6}, s[{S_DBG}:{S_DBG+1}] sc1", "s_waitcnt vmcnt(0)", f"s_branch {lp}")
            A.label(dn)
        self.opar = 0
        self.onext = [(0, 4), (0, 5)]
        self.oproj_steps([(0, kk, blks) for kk in range(4)], first_c0={(0, b) for b in blks})
        A(f"s_waitcnt vmcnt({8*(nblk-1)})", "s_barrier")
        def warm(blk):
            out = []
            if "warm" not in self.dbg: return out
            for half in range(2):
                out.append(f"s_add_u32 s{S_T1}, s{S_PUB}, {(blk*8 + half*4)*1024}")
                for q in range(4):
                    out.append(f"buffer_load_dwordx4 {ar(PFR(3, blk, half*4+q),4)}, v{VL16}, s[{SRD_WS}:{SRD_WS+3}], s{S_T1} offen offset:{q*1024} sc1")
            return out
        if lw: self.flag_store(FLAG1)
        self.onext = [(1, 0), (1, 1)]
        self.oproj_steps([(0, kk, blks) for kk in range(4, 8)], fill={0: warm(0)})
        self.tstamp("own")
        if not lw: A("s_waitcnt vmcnt(8)" if "warm" in self.dbg else "s_waitcnt vmcnt(0)")
        A("s_barrier")
        if not lw:
            for x in warm(1): A(x)
        self.tstamp("ack1")
        self.rstamp(7)
        def pflags(base):
            A(f"v_add_u32 v{V_EP+6}, 1, v{V_LANE}", f"v_lshlrev_b32 v{V_EP+6}, 3, v{V_EP+6}", f"v_xor_b32 v{V_EP+6}, s2, v{V_EP+6}", f"v_lshlrev_b32 v{V_EP+6}, 7, v{V_EP+6}")
            if base: A(f"v_add_u32 v{V_EP+6}, {base}, v{V_EP+6}")
        if lw:
            self.flag_store(FLAG1B)
            pflags(FLAG1)
            self.poll(3, V_EP + 6)
        A("s_barrier")
        self.tstamp("poll1")
        self.stamp(11)
        def group(o, blk):
            out = []
            for half in range(2):
                out.append(f"s_add_u32 s{S_T1}, s{PB[o-1]}, {(blk*8 + half*4)*1024}")
                for q in range(4):
                    out.append(f"buffer_load_dwordx4 {ar(PFR(o, blk, half*4+q),4)}, v{VL16}, s[{SRD_WS}:{SRD_WS+3}], s{S_T1} offen offset:{q*1024}{'' if 'r1plain' in self.dbg else ' sc1'}")
            return out
        for o in range(1, 4):
            for x in group(o, 0): A(x)
        stepsA = [(o, kk, [0]) for o in range(1, 4) for kk in range(8)]
        if lw:
            pflags(FLAG1B)
            self.poll(3, V_EP + 6)
            A("s_barrier")
            self.onext = None
            self.oproj_steps(stepsA, pre={0: ["s_waitcnt vmcnt(0)"]})
        else:
            g1 = group(1, 1) + group(2, 1) + group(3, 1)
            fill = {8: g1[:10], 9: g1[10:20], 10: g1[20:]}
            pre = {0: ["s_waitcnt vmcnt(16)"], 8: ["s_barrier", "s_waitcnt vmcnt(8)"], 16: ["s_waitcnt vmcnt(24)"]}
            self.onext = [(1, 0), (1, 1)]
            self.oproj_steps(stepsA, pre=pre, fill=fill)
        self.tstamp("phA")
        def pack(blk):
            out = []
            for nb in range(4):
                a = ACC(blk, nb)
                for u in range(2):
                    d = 128 + (blk * 8 + nb * 2 + u) * 4
                    for pj in range(4): out.append(f"v_cvt_pk_bf16_f32 v{d+pj}, v{a+8*u+2*pj}, v{a+8*u+2*pj+1}")
            return out
        if nblk == 2:
            stepsB = [(o, kk, [1]) for o in range(1, 4) for kk in range(8)]
            pk = pack(0); st = self.stores(S_PART, 0, 128)
            fill = {}
            for i in range(4): fill[1 + i] = pk[8*i:8*i+8]
            fill[5] = st[:5]; fill[6] = st[5:]
            preB = {0: ["s_waitcnt vmcnt(16)"], 8: ["s_waitcnt vmcnt(16)"], 16: ["s_waitcnt vmcnt(8)"], 20: ["s_waitcnt vmcnt(0)", "s_barrier"]}
            self.onext = None
            self.oproj_steps(stepsB, pre=preB, fill=fill)
            A("s_nop 7", "s_nop 7")
            for x in pack(1): A(x)
            for x in self.stores(S_PART, 1, 128 + 32): A(x)
            self.tstamp("phB")
            A("s_waitcnt vmcnt(0)", "s_barrier")
        else:
            A("s_nop 7", "s_nop 7")
            for x in pack(0): A(x)
            for x in self.stores(S_PART, 0, 128): A(x)
            A("s_waitcnt vmcnt(0)", "s_barrier")
            self.flag_store(FLAG2)
            A(f"v_add_u32 v{V_EP+6}, {FLAG2}, v{V_P2}")
            self.poll(8, V_EP + 6)
            self.tstamp("phB")
            A("s_barrier")
            self.flag_store(FLAG2B)
        self.tstamp("ack2")
        def unit_loads(u):
            for sp in range(8):
                d = (u * 8 + sp) * 4
                A(f"s_add_u32 s{S_T1}, s{S_RA}, {sp*65536 + u*8192}")
                A(f"buffer_load_dwordx4 {vr(d,4)}, v{V_VL}, s[{SRD_WS}:{SRD_WS+3}], s{S_T1} offen sc1")
        def unit_reduce(u):
            lo = 176 + u * 8; hi = lo + 4
            for sp in range(8):
                d = (u * 8 + sp) * 4
                if sp in (0, 4): A(f"s_waitcnt vmcnt({4 - sp})")
                for q in range(4):
                    A(f"v_dot2_f32_bf16 v{lo+q}, v{d+q}, s{S_ONE_LO}, {'0' if sp == 0 else f'v{lo+q}'}", f"v_dot2_f32_bf16 v{hi+q}, v{d+q}, s{S_ONE_HI}, {'0' if sp == 0 else f'v{hi+q}'}")
            r = 228 + u * 4
            A("s_nop 1")
            for q in range(4): A(f"v_cvt_pk_bf16_f32 v{r+q}, v{lo+q}, v{hi+q}")
            A("s_nop 1")
            A(f"v_permlane32_swap_b32 v{r}, v{r+2}", f"v_permlane32_swap_b32 v{r+1}, v{r+3}")
            A(f"s_add_u32 s{S_T1}, s{S_OA}, {u*32768}")
            A(f"buffer_store_dwordx4 {vr(r,4)}, v{V_VO}, s[{SRD_OUT}:{SRD_OUT+3}], s{S_T1} offen")
        unit_loads(0)
        if lw:
            A(f"v_add_u32 v{V_EP+6}, {FLAG2B}, v{V_P2}")
            self.poll(8, V_EP + 6)
            A("s_barrier")
            self.tstamp("poll2")
            unit_reduce(0)
            A(f"s_cmp_ge_u32 s{S_J}, 6", f"s_cbranch_scc1 L_fin_{tag}")
            unit_loads(1)
            unit_reduce(1)
        else:
            unit_reduce(0)
            A("s_barrier")
            self.tstamp("poll2")
            A(f"s_cmp_ge_u32 s{S_J}, 6", f"s_cbranch_scc1 L_fin_{tag}")
            unit_loads(1)
            if "tst2" in self.dbg:
                A("s_waitcnt vmcnt(0)"); self.tstamp("ld2")
            unit_reduce(1)
        A.label(f"L_fin_{tag}")
        if self.timing: A("s_waitcnt vmcnt(0)")

    def path(self, lw):
        A = self.A
        nblk = 1 if lw else 2
        self.lock = False
        if lw:
            A.label("L_LW")
            self.srds_rest()
            if self.stage >= 3:
                lb = self.lab("noep")
                A("s_cmp_lg_u32 s2, 0", f"s_cbranch_scc1 {lb}")
                A("s_memrealtime s[100:101]", "s_waitcnt lgkmcnt(0)", "s_or_b32 s100, s100, 1")
                A(f"v_mov_b32 v{V_EP}, s100", f"v_mov_b32 v{V_EP+1}, s101", f"v_mov_b32 v{V_EP+6}, 0")
                A(f"s_mov_b64 s[{S_T2}:{S_T3}], exec", "s_mov_b64 exec, 1")
                A(f"global_store_dwordx2 v{V_EP+6}, v[{V_EP}:{V_EP+1}], s[{S_DBG}:{S_DBG+1}] sc1")
                A(f"s_mov_b64 exec, s[{S_T2}:{S_T3}]")
                A.label(lb)
            self.addr_regs()
        else:
            self.q_slots_post()
            A(f"s_mov_b32 s{S_KC}, s{S_ROT}")
            self.pstamp(2)
            for g in self.q_dma(0, self.QSTEP[0]): A(*g)
            self.pstamp(3)
            self.srds_rest()
            self.addr_regs()
            self.pstamp(4)
            for g in self.q_dma(1, self.QSTEP[1]): A(*g)
            self.pstamp(5)
        A(f"s_add_u32 s{S_T0}, s{S_C}, s{S_WAVE}", f"s_and_b32 s{S_T0}, s{S_T0}, 3", f"s_lshl_b32 s{S_WOOFF}, s{S_T0}, 17")
        A(f"s_lshl_b32 s{S_WOLDS}, s{S_WAVE}, 15")
        A(f"s_mov_b32 s{S_KOFF}, {4*8192}", f"s_mov_b32 s{S_VOFF}, {3*8192}")
        self.stamp(1)
        if not lw: A("s_waitcnt vmcnt(12)" if "q0" not in self.dbg else "s_waitcnt vmcnt(0)")
        self.pstamp(6)
        A("s_barrier")
        self.pstamp(7)
        for r in self.q_reads(0, 0, nblk): A(r)
        self.stamp(2)
        for i in range(7):
            self.q_iter(i, nblk, lw)
            if "qst" in self.dbg and i in (0, 1, 2, 4): self.stamp({0: 3, 1: 4, 2: 5, 4: 6}[i])
        self.q_last(nblk, lw)
        self.stamp(3 if "qst" not in self.dbg else 7)
        self.lock = True
        if self.stage == 1:
            self.dump_frags(nblk, lambda b, c: ar(QF(b, c), 4)); A("s_branch L_end"); return
        if "exitq" in self.dbg:
            self.dump_stamps(); A("s_endpgm")
        self.attention(lw)
        self.stamp(5)
        if "exita" in self.dbg:
            self.dump_stamps(); A("s_endpgm")
        if self.stage == 2:
            A("s_nop 7", "s_nop 7")
            self.normalize(nblk)
            self.dump_frags(nblk, lambda b, c: vr(OFR(b, c), 4))
            self.stamp(6); self.stamp(7)
            self.dump_stamps()
            A("s_branch L_end"); return
        self.tail(lw)
        self.tstamp("end")
        self.stamp(12)
        self.dump_stamps()
        A("s_branch L_end")

    def build(self):
        A = self.A
        hdr = []
        hdr.append(open("standalone__gqa_block_cached__near_ridge.s.ref").read().split("; Override")[0].rstrip())
        hdr.append(f"; @launch grid=(256,1,1) block=(256,1,1) lds={LDS_BYTES}")
        hdr.append('.amdgcn_target "amdgcn-amd-amdhsa--gfx950"')
        hdr.append(f".text\n.globl {NAME}\n.p2align 8\n.type {NAME},@function\n{NAME}:")
        self.prologue()
        self.path(False)
        self.path(True)
        if self.stage >= 3:
            self.slow_path(False)
            self.slow_path(True)
        A.label("L_end")
        A("s_endpgm")
        A.L = check_hazards(A.L, fix=True)
        tail = f""".section .rodata,"a"
.p2align 6
.amdhsa_kernel {NAME}
  .amdhsa_next_free_vgpr 512
  .amdhsa_next_free_sgpr 102
  .amdhsa_accum_offset 256
  .amdhsa_group_segment_fixed_size 0
  .amdhsa_kernarg_size 64
  .amdhsa_user_sgpr_count 2
  .amdhsa_user_sgpr_kernarg_segment_ptr 1
  .amdhsa_system_sgpr_workgroup_id_x 1
.end_amdhsa_kernel
"""
        return "\n".join(hdr) + "\n" + A.text() + tail

if __name__ == "__main__":
    stage = int(sys.argv[1]) if len(sys.argv) > 1 else 3
    out = sys.argv[2] if len(sys.argv) > 2 else "k.s"
    timing = len(sys.argv) > 3 and sys.argv[3] == "t"
    dbg = sys.argv[4].split(",") if len(sys.argv) > 4 else ()
    open(out, "w").write(Gen(stage, timing, dbg).build())
```
